```python
import torch

def _softmax(x, axis=-1):
    return torch.softmax(x, dim=axis)
def _gelu(x):
    return torch.nn.functional.gelu(x, approximate="tanh")
def _silu(x):
    return torch.nn.functional.silu(x)
def _sigmoid(x):
    return torch.sigmoid(x)
def _layernorm(x, axis=-1, eps=1e-5):
    m = x.mean(dim=axis, keepdim=True)
    v = x.var(dim=axis, keepdim=True, unbiased=False)
    return (x - m) / torch.sqrt(v + eps)
def _scatter_add(tgt, idx, src, axis=0):
    return tgt.clone().index_add_(axis, idx, src)
def _segment_sum(src, seg, n):
    out = torch.zeros((n,) + src.shape[1:], dtype=src.dtype)
    return out.index_add_(0, seg, src)
def _pad(x, pw):
    flat = tuple(v for pair in reversed(pw) for v in pair)
    return torch.nn.functional.pad(x, flat)

kernel_name = 'standalone__batchnorm__sampling'

def setup_inputs():

    _w = (lambda a: (lambda t: t.to(torch.bfloat16) if t.is_floating_point() else t)(torch.as_tensor(a)))
    B, S, C = 1024, 16, 512
    K = 3
    return {
        "x": _w((lambda *s: torch.randn(*s, dtype=torch.bfloat16) * 0.05)(B, S, C)),
        "w": _w((lambda *s: torch.randn(*s, dtype=torch.bfloat16) * 0.05)(K, C, C) * (1.0 / (K * C) ** 0.5)),
        "mean": _w((lambda *s: torch.randn(*s, dtype=torch.bfloat16) * 0.05)(C) * 0.1),
        "var": _w(torch.abs((lambda *s: torch.randn(*s, dtype=torch.bfloat16) * 0.05)(C)) + 0.5),
        "g": _w((lambda *s: torch.randn(*s, dtype=torch.bfloat16) * 0.05)(C) + 1.0),
        "b": _w((lambda *s: torch.randn(*s, dtype=torch.bfloat16) * 0.05)(C) * 0.1),
    }

def reference(x, w, mean, var, g, b):
    K = 3
    P = K // 2
    S = x.shape[1]
    xp = _pad(x, ((0, 0), (P, P), (0, 0)))
    y = sum(torch.einsum('bsc,cd->bsd', xp[:, k:k + S, :], w[k]) for k in range(K))
    inv_std = 1.0 / torch.sqrt(var + 1e-5)
    y = (y - mean) * (g * inv_std) + b
    return _silu(y)
```

```python
import sys, argparse

KN = "standalone__batchnorm__sampling_kernel"
HEADER = """; Kernarg layout (72 bytes, ptrs only, base s[0:1]):
"""

class Asm:
    def __init__(self): self.l = []
    def __call__(self, s): self.l.append("    " + s)
    def label(self, s): self.l.append(s + ":")
    def c(self, s): self.l.append("    ; " + s)
    def text(self): return "\n".join(self.l) + "\n"

def gen(o):
    A = Asm()
    XB = 0
    WB = 65536
    LDS = WB + 3 * 24576
    sX, sW, sO = 8, 12, 16
    sP = 20
    sWS = 24
    vXa, vXb, vW0, vW1, vOut = 1, 2, 3, 4, 5
    XF = 16
    WF = 32
    PS = 80
    PT = 88
    ACC = 128
    def acc(s, T): return ACC + (s * 2 + T) * 4
    def wf(st, k, T): return WF + st * 24 + (k * 2 + T) * 4
    def xf(s): return XF + (s % 4) * 4
    stamps = o.stamps
    def stamp(i, real=False):
        if stamps:
            A(f"s_mem{'real' if real else ''}time s[{40+2*i}:{41+2*i}]")

    A.label(KN)
    stamp(0, True); stamp(1)
    A("s_cmp_ge_u32 s2, 256")
    A("s_cbranch_scc1 L_end")
    A("s_load_dwordx4 s[28:31], s[0:1], 0")
    A("s_load_dwordx8 s[64:71], s[0:1], 16")
    A("s_load_dwordx2 s[72:73], s[0:1], 48")
    if stamps: A("s_load_dwordx2 s[74:75], s[0:1], 64")
    A("v_lshrrev_b32 v6, 6, v0")
    A("v_and_b32 v0, 63, v0")
    A("v_readfirstlane_b32 s3, v6")
    A("s_and_b32 s4, s2, 7")
    A("s_lshr_b32 s5, s2, 3")
    A("s_and_b32 s6, s5, 3")
    A("s_lshr_b32 s5, s5, 2")
    A("s_lshl_b32 s4, s4, 3")
    A("s_add_u32 s7, s4, s5")
    A("s_lshl_b32 s7, s7, 18")
    A("s_lshl_b32 s6, s6, 8")
    A("s_cmp_ge_u32 s3, 4")
    A("s_cbranch_scc1 L_loader")

    A.c("compute wave: addresses")
    A("v_and_b32 v6, 15, v0")
    A("v_lshrrev_b32 v7, 4, v0")
    A("v_lshrrev_b32 v8, 1, v6")
    A("v_xor_b32 v8, v8, v7")
    A("v_lshlrev_b32 v8, 4, v8")
    A("v_and_b32 v9, 7, v6")
    A("v_lshl_add_u32 v8, v9, 7, v8")
    A("v_lshrrev_b32 v9, 3, v6")
    A(f"v_lshl_add_u32 v{vXa}, v9, 13, v8")
    A(f"v_xor_b32 v{vXb}, 0x8040, v{vXa}")
    A("v_lshrrev_b32 v8, 2, v6")
    A("v_and_b32 v9, 3, v0")
    A("v_and_b32 v10, 1, v7")
    A("v_lshl_add_u32 v10, v10, 2, v8")
    A("v_lshlrev_b32 v10, 1, v10")
    A("v_lshrrev_b32 v11, 1, v9")
    A("s_lshl_b32 s28+0, s3, 2".replace("s28+0", "s33"))
    A("v_add_u32 v11, s33, v11")
    A("v_xor_b32 v11, v11, v10")
    A("v_lshlrev_b32 v11, 4, v11")
    A("v_lshl_add_u32 v11, v8, 10, v11")
    A("v_lshl_add_u32 v11, v7, 8, v11")
    A("v_and_b32 v9, 1, v9")
    A("v_lshl_add_u32 v11, v9, 3, v11")
    A(f"v_add_u32 v{vW0}, {WB}, v11")
    A(f"v_xor_b32 v{vW1}, 32, v{vW0}")
    A("v_lshlrev_b32 v12, 3, v7")
    A("s_lshl_b32 s33, s3, 6")
    A("s_add_u32 s33, s33, s6")
    A("v_add_u32 v12, s33, v12")
    A("v_and_b32 v8, 1, v7")
    A("v_lshrrev_b32 v9, 1, v7")
    A("v_lshl_add_u32 v8, v8, 1, v9")
    A("v_lshlrev_b32 v8, 4, v8")
    A("v_lshl_add_u32 v8, v6, 14, v8")
    A("s_add_u32 s33, s33, s7")
    A(f"v_add_u32 v{vOut}, s33, v8")
    for i in range(128):
        A(f"v_mov_b32 v{ACC+i}, 0")
    A("s_waitcnt lgkmcnt(0)")
    stamp(2)
    for i in range(4):
        A(f"s_mov_b32 s{sP}, s{64+2*i}")
        A(f"s_and_b32 s{sP+1}, s{65+2*i}, 0xffff")
        A(f"s_mov_b32 s{sP+2}, 1024")
        A(f"s_mov_b32 s{sP+3}, 0x20000")
        A(f"buffer_load_dwordx2 v[{96+4*i}:{97+4*i}], v12, s[{sP}:{sP+3}], 0 offen")
        A(f"buffer_load_dwordx2 v[{98+4*i}:{99+4*i}], v12, s[{sP}:{sP+3}], 0 offen offset:32")
    A(f"s_mov_b32 s{sO}, s72")
    A(f"s_and_b32 s{sO+1}, s73, 0xffff")
    A(f"s_mov_b32 s{sO+2}, 0x1000000")
    A(f"s_mov_b32 s{sO+3}, 0x20000")
    A("s_mov_b32 s34, 0x3fb8aa3b")
    A("s_mov_b32 s35, 0x3fb8aa3b")
    A("s_mov_b32 s36, 4096")
    A("s_mov_b32 s37, 8192")
    A("s_mov_b32 s38, 12288")
    A("s_waitcnt vmcnt(0)")
    for e in range(8):
        d = e >> 1
        def unp(dst, src):
            if e & 1: A(f"v_and_b32 v{dst}, 0xffff0000, v{src}")
            else:     A(f"v_lshlrev_b32 v{dst}, 16, v{src}")
        unp(112, 100 + d); unp(113, 104 + d); unp(114, 96 + d); unp(115, 108 + d)
        A("v_add_f32 v112, 0x3727c5ac, v112")
        A("v_sqrt_f32 v112, v112")
        A("s_nop 0")
        A("v_rcp_f32 v112, v112")
        A("s_nop 0")
        A("v_mul_f32 v112, v113, v112")
        A("v_fma_f32 v115, -v114, v112, v115")
        A(f"v_mul_f32 v{PS+e}, s34, v112")
        A(f"v_mul_f32 v{PT+e}, s34, v115")
    A("s_mov_b32 s32, 0")
    A("s_mov_b32 s39, 0")
    A("s_barrier")
    stamp(3)

    q = []
    def lds(tag, s):
        A(s); q.append(tag)
    def wait(tags):
        idx = max([i for i, t in enumerate(q) if t in tags], default=-1)
        if idx < 0: return
        n = len(q) - 1 - idx
        assert n <= 15
        A(f"s_waitcnt lgkmcnt({n})")
        del q[:idx + 1]
    def rdx(s, kk, tagstep):
        v = vXa if kk == 0 else vXb
        lds(("x", tagstep, s), f"ds_read_b128 v[{xf(s)}:{xf(s)+3}], v{v} offset:{XB + (s//8)*16384 + (s%8)*1024}")
    def rdw(st, k, T, h, tagstep):
        v = vW0 if T == 0 else vW1
        r = wf(st, k, T) + 2 * h
        lds(("w", tagstep, k, T), f"ds_read_b64_tr_b16 v[{r}:{r+1}], v{v} offset:{k*8192 + h*4096}")
    worder = [(k, T, h) for k in (1, 0, 2) for T in (0, 1) for h in (0, 1)]
    for (k, T, h) in worder[:4]: rdw(0, k, T, h, 0)
    rdx(0, 0, 0)
    for (k, T, h) in worder[4:]: rdw(0, k, T, h, 0)
    rdx(1, 0, 0); rdx(2, 0, 0)
    A("s_waitcnt lgkmcnt(2)")
    q[:] = [("x", 0, 1), ("x", 0, 2)]
    q0 = None

    def step(kk):
        st = kk
        fill = {}
        def at(s, i, f): fill.setdefault((s, i), []).append(f)
        for s in range(16):
            if s == 5: continue
            if s == 6:
                at(6, 0, lambda: rdx(8, kk, kk)); at(6, 1, lambda: rdx(9, kk, kk)); continue
            t = s + 3
            if t < 16: at(s, 0, lambda t=t: rdx(t, kk, kk))
            else:      at(s, 0, lambda t=t: rdx(t - 16, 1 - kk, 1 - kk))
        def adv():
            A("s_add_u32 s39, s39, 1")
            A("s_cmp_eq_u32 s39, 3")
        def adv2():
            A("s_cselect_b32 s33, -49152, 24576" if False else "s_cselect_b32 s33, s76, s77")
            A("s_cselect_b32 s39, 0, s39")
        def adv3(): A(f"v_add_u32 v{vW0}, s33, v{vW0}")
        def adv4(): A(f"v_add_u32 v{vW1}, s33, v{vW1}")
        at(1, 2, adv); at(1, 3, adv2); at(2, 2, adv3); at(2, 3, adv4)
        tog = vXb if kk == 0 else vXa
        at(3, 2, lambda: A(f"v_xor_b32 v{tog}, 0x8000, v{tog}"))
        wi = 0
        slots = [(6, 3), (6, 5), (7, 2), (7, 4), (8, 2), (8, 4), (9, 2), (9, 4), (10, 2), (10, 4), (11, 2), (11, 4)]
        for (k, T, h), (s, i) in zip(worder, slots):
            at(s, i, lambda k=k, T=T, h=h: rdw(1 - st, k, T, h, 1 - kk))
        for s in range(16):
            ms = [(k, T) for k in (2, 1, 0) for T in (0, 1) if 0 <= s + 1 - k <= 15]
            need = [("x", kk, s)]
            if s == 0: need += [("w", kk, k, T) for k in range(3) for T in range(2)]
            wait(need)
            for i, (k, T) in enumerate(ms):
                a = acc(s + 1 - k, T)
                if not o.nomfma:
                    A(f"v_mfma_f32_16x16x32_bf16 v[{a}:{a+3}], v[{wf(st,k,T)}:{wf(st,k,T)+3}], v[{xf(s)}:{xf(s)+3}], v[{a}:{a+3}]")
                for f in fill.pop((s, i), []): f()
            if s == 5:
                A("s_waitcnt lgkmcnt(0)"); q.clear()
                A("s_barrier")
        assert not fill, fill
    A("s_mov_b32 s76, -49152")
    A("s_mov_b32 s77, 24576")
    A(".p2align 3")
    A.label("L_loop")
    state0 = [("x", 0, 0), ("x", 0, 1), ("x", 0, 2)]
    q[:] = state0
    step(0); step(1)
    assert q == state0, q
    A("s_add_u32 s32, s32, 1")
    A("s_cmp_lt_u32 s32, 8")
    A("s_cbranch_scc1 L_loop")
    stamp(4)
    A("s_waitcnt lgkmcnt(0)")
    A("s_nop 7")
    for s in range(16):
        t = 96 + (s % 2) * 16
        ob = 16 + (s % 4) * 4
        if o.pk:
            for T in range(2):
                for r in (0, 2):
                    e = T * 4 + r
                    A(f"v_pk_fma_f32 v[{t+e}:{t+e+1}], v[{acc(s,T)+r}:{acc(s,T)+r+1}], v[{PS+e}:{PS+e+1}], v[{PT+e}:{PT+e+1}]")
            for e in range(8): A(f"v_exp_f32 v{t+8+e}, -v{t+e}")
            for e in range(0, 8, 2): A(f"v_pk_fma_f32 v[{t+8+e}:{t+9+e}], v[{t+8+e}:{t+9+e}], s[34:35], s[34:35]")
            for e in range(8): A(f"v_rcp_f32 v{t+8+e}, v{t+8+e}")
            for e in range(0, 8, 2): A(f"v_pk_mul_f32 v[{t+e}:{t+e+1}], v[{t+e}:{t+e+1}], v[{t+8+e}:{t+9+e}]")
        else:
            for T in range(2):
                for r in range(4):
                    e = T * 4 + r
                    A(f"v_fma_f32 v{t+e}, v{acc(s,T)+r}, v{PS+e}, v{PT+e}")
            for e in range(8): A(f"v_exp_f32 v{t+8+e}, -v{t+e}")
            for e in range(8): A(f"v_fma_f32 v{t+8+e}, v{t+8+e}, s34, s34")
            for e in range(8): A(f"v_rcp_f32 v{t+8+e}, v{t+8+e}")
            for e in range(8): A(f"v_mul_f32 v{t+e}, v{t+e}, v{t+8+e}")
        for p in range(4): A(f"v_cvt_pk_bf16_f32 v{ob+p}, v{t+2*p}, v{t+2*p+1}")
        A("s_nop 1")
        A(f"v_permlane16_swap_b32 v{ob}, v{ob+2}")
        A(f"v_permlane16_swap_b32 v{ob+1}, v{ob+3}")
        so = ["0", "s36", "s37", "s38"][s // 4]
        if not o.nostore:
            A(f"buffer_store_dwordx4 v[{ob}:{ob+3}], v{vOut}, s[{sO}:{sO+3}], {so} offen offset:{(s%4)*1024} {o.stflag}")
    stamp(5)
    if stamps:
        A("s_waitcnt vmcnt(0)")
        stamp(6); stamp(7, True)
        A("s_cmp_lg_u32 s3, 0")
        A("s_cbranch_scc1 L_end")
        A(f"s_mov_b32 s{sWS}, s74")
        A(f"s_and_b32 s{sWS+1}, s75, 0xffff")
        A(f"s_mov_b32 s{sWS+2}, 0x100000")
        A(f"s_mov_b32 s{sWS+3}, 0x20000")
        A("s_waitcnt lgkmcnt(0)")
        A("s_lshl_b32 s33, s2, 6")
        A("v_mov_b32 v6, 0")
        for i in range(4):
            for jx in range(4): A(f"v_mov_b32 v{8+jx}, s{40+4*i+jx}")
            A(f"buffer_store_dwordx4 v[8:11], v6, s[{sWS}:{sWS+3}], s33 offen offset:{16*i}")
            A("s_nop 1")
    A("s_endpgm")

    A.label("L_loader")
    A("s_sub_u32 s3, s3, 4")
    A("v_lshrrev_b32 v6, 4, v0")
    A("v_and_b32 v7, 15, v0")
    A("v_and_b32 v8, 1, v6")
    A("v_lshlrev_b32 v8, 2, v8")
    A("v_or_b32 v8, s3, v8")
    A("v_lshlrev_b32 v8, 1, v8")
    A("v_xor_b32 v8, v8, v7")
    A("v_lshlrev_b32 v8, 4, v8")
    A("v_lshl_add_u32 v8, v6, 13, v8")
    A("s_lshl_b32 s33, s3, 10")
    A("s_add_u32 s34, s33, s6")
    A("v_add_u32 v1, s34, v8")
    A("s_and_b32 s35, s3, 1")
    A("s_lshr_b32 s36, s3, 1")
    A("v_lshrrev_b32 v6, 3, v0")
    A("v_and_b32 v7, 7, v0")
    A("v_lshrrev_b32 v8, 1, v6")
    A("s_lshl_b32 s37, s35, 2")
    A("v_add_u32 v8, s37, v8")
    A("v_xor_b32 v8, v8, v7")
    A("v_lshlrev_b32 v8, 4, v8")
    A("v_lshl_add_u32 v8, v6, 14, v8")
    A("s_lshl_b32 s37, s35, 17")
    A("s_add_u32 s37, s37, s7")
    A("s_lshl_b32 s38, s36, 12")
    A("s_add_u32 s37, s37, s38")
    A("v_add_u32 v2, s37, v8")
    A(f"s_add_u32 s60, s33, {WB}")
    A("s_lshl_b32 s61, s35, 13")
    A("s_add_u32 s61, s61, s38")
    A("s_mov_b32 s62, 0")
    A("s_mov_b32 s63, 0")
    A("s_mov_b32 s59, 0")
    A("s_waitcnt lgkmcnt(0)")
    A(f"s_mov_b32 s{sX}, s28")
    A(f"s_and_b32 s{sX+1}, s29, 0xffff")
    A(f"s_mov_b32 s{sX+2}, 0x1000000")
    A(f"s_mov_b32 s{sX+3}, 0x20000")
    A(f"s_mov_b32 s{sW}, s30")
    A(f"s_and_b32 s{sW+1}, s31, 0xffff")
    A(f"s_mov_b32 s{sW+2}, 0x180000")
    A(f"s_mov_b32 s{sW+3}, 0x20000")
    def group():
        A("s_and_b32 s33, s63, 3")
        A("s_lshl_b32 s33, s33, 14")
        A("s_add_u32 m0, s33, s61")
        A("s_and_b32 s33, s63, 1")
        A("s_lshl_b32 s33, s33, 13")
        A("s_lshr_b32 s34, s63, 1")
        A("s_lshl_b32 s34, s34, 7")
        A("s_add_u32 s33, s33, s34")
        if not o.nodma:
            for i in range(4):
                A(f"buffer_load_dwordx4 v2, s[{sX}:{sX+3}], s33 offen offset:{i*1024} lds")
        for grp in range(6):
            A(f"s_add_u32 m0, s60, {grp*4096}")
            A(f"s_add_u32 s33, s62, {(grp//2)*524288 + (grp%2)*4096}")
            if not o.nodma:
                A(f"buffer_load_dwordx4 v1, s[{sW}:{sW+3}], s33 offen lds")
        A("s_add_u32 s63, s63, 1")
        A("s_add_u32 s62, s62, 32768")
        A("s_add_u32 s60, s60, 24576")
        A("s_add_u32 s59, s59, 1")
        A("s_cmp_eq_u32 s59, 3")
        A("s_cselect_b32 s33, 73728, 0")
        A("s_sub_u32 s60, s60, s33")
        A("s_cmp_eq_u32 s59, 3")
        A("s_cselect_b32 s59, 0, s59")
    A.label("L_ldpro")
    group()
    A("s_cmp_lt_u32 s63, 3")
    A("s_cbranch_scc1 L_ldpro")
    A("s_waitcnt vmcnt(20)")
    A("s_barrier")
    A.label("L_ldloop")
    A("s_waitcnt vmcnt(10)")
    A("s_barrier")
    group()
    A("s_cmp_lt_u32 s63, 16")
    A("s_cbranch_scc1 L_ldloop")
    A("s_waitcnt vmcnt(10)")
    A("s_barrier")
    A("s_waitcnt vmcnt(0)")
    A("s_barrier")
    A("s_barrier")
    A.label("L_end")
    A("s_endpgm")
    txt = HEADER + f"; @launch grid=(256,1,1) block=(512,1,1) lds={LDS}\n" + \
        '.amdgcn_target "amdgcn-amd-amdhsa--gfx950"\n.text\n' + \
        f".globl {KN}\n.p2align 8\n.type {KN},@function\n" + A.text() + \
        f""".section .rodata,"a"
.p2align 6
.amdhsa_kernel {KN}
  .amdhsa_next_free_vgpr 256
  .amdhsa_next_free_sgpr 96
  .amdhsa_accum_offset 256
  .amdhsa_group_segment_fixed_size 0
  .amdhsa_kernarg_size 72
  .amdhsa_user_sgpr_count 2
  .amdhsa_user_sgpr_kernarg_segment_ptr 1
  .amdhsa_system_sgpr_workgroup_id_x 1
  .amdhsa_float_denorm_mode_32 3
.end_amdhsa_kernel
"""
    return txt

if __name__ == "__main__":
    ap = argparse.ArgumentParser()
    ap.add_argument("out")
    ap.add_argument("--stamps", action="store_true")
    ap.add_argument("--nomfma", action="store_true")
    ap.add_argument("--nodma", action="store_true")
    ap.add_argument("--nostore", action="store_true")
    ap.add_argument("--pk", action="store_true")
    ap.add_argument("--stflag", default="")
    o = ap.parse_args()
    open(o.out, "w").write(gen(o))
```

```python
import sys, argparse

KN = "standalone__batchnorm__sampling_kernel"
HEADER = """; Kernarg layout (72 bytes, ptrs only, base s[0:1]):
"""

class Asm:
    def __init__(self): self.l = []
    def __call__(self, s): self.l.append("    " + s)
    def label(self, s): self.l.append(s + ":")
    def c(self, s): self.l.append("    ; " + s)
    def text(self): return "\n".join(self.l) + "\n"

def gen(o):
    A = Asm()
    XB = 0
    WB = 65536
    LDS = WB + 3 * 24576
    sX, sW, sO = 8, 12, 16
    sP = 20
    sWS = 24
    vXa, vXb, vW0, vW1, vOut = 1, 2, 3, 4, 5
    XF = 16
    WF = 32
    PS = 80
    PT = 88
    ACC = 128
    def acc(s, T): return ACC + (s * 2 + T) * 4
    def wf(st, k, T): return WF + st * 24 + (k * 2 + T) * 4
    def xf(s): return XF + (s % 4) * 4
    stamps = o.stamps
    def stamp(i):
        if stamps:
            A(f"s_memtime s[{40+2*i}:{41+2*i}]")
            A(f"s_memrealtime s[{80+2*i}:{81+2*i}]")

    A.label(KN)
    stamp(0)
    A("s_cmp_ge_u32 s2, 256")
    A("s_cbranch_scc1 L_end")
    A("s_load_dwordx4 s[28:31], s[0:1], 0")
    A("s_load_dwordx8 s[64:71], s[0:1], 16")
    A("s_load_dwordx2 s[72:73], s[0:1], 48")
    if stamps: A("s_load_dwordx2 s[74:75], s[0:1], 64")
    A("v_lshrrev_b32 v6, 6, v0")
    A("v_and_b32 v0, 63, v0")
    A("v_readfirstlane_b32 s3, v6")
    A("s_and_b32 s4, s2, 7")
    A("s_lshr_b32 s5, s2, 3")
    A("s_and_b32 s6, s5, 3")
    A("s_lshr_b32 s5, s5, 2")
    A("s_lshl_b32 s4, s4, 3")
    A("s_add_u32 s7, s4, s5")
    A("s_lshl_b32 s7, s7, 18")
    A("s_lshl_b32 s6, s6, 8")
    A("s_cmp_ge_u32 s3, 4")
    A("s_cbranch_scc1 L_loader")

    A.c("compute wave: addresses")
    A("v_and_b32 v6, 15, v0")
    A("v_lshrrev_b32 v7, 4, v0")
    A("v_lshrrev_b32 v8, 1, v6")
    A("v_xor_b32 v8, v8, v7")
    A("v_lshlrev_b32 v8, 4, v8")
    A("v_and_b32 v9, 7, v6")
    A("v_lshl_add_u32 v8, v9, 7, v8")
    A("v_lshrrev_b32 v9, 3, v6")
    A(f"v_lshl_add_u32 v{vXa}, v9, 13, v8")
    A(f"v_xor_b32 v{vXb}, 0x8040, v{vXa}")
    A("v_lshrrev_b32 v8, 2, v6")
    A("v_and_b32 v9, 3, v0")
    A("v_and_b32 v10, 1, v7")
    A("v_lshl_add_u32 v10, v10, 2, v8")
    A("v_lshlrev_b32 v10, 1, v10")
    A("v_lshrrev_b32 v11, 1, v9")
    A("s_lshl_b32 s28+0, s3, 2".replace("s28+0", "s33"))
    A("v_add_u32 v11, s33, v11")
    A("v_xor_b32 v11, v11, v10")
    A("v_lshlrev_b32 v11, 4, v11")
    A("v_lshl_add_u32 v11, v8, 10, v11")
    A("v_lshl_add_u32 v11, v7, 8, v11")
    A("v_and_b32 v9, 1, v9")
    A("v_lshl_add_u32 v11, v9, 3, v11")
    A(f"v_add_u32 v{vW0}, {WB}, v11")
    A(f"v_xor_b32 v{vW1}, 32, v{vW0}")
    A("v_lshlrev_b32 v12, 3, v7")
    A("s_lshl_b32 s33, s3, 6")
    A("s_add_u32 s33, s33, s6")
    A("v_add_u32 v12, s33, v12")
    A("v_and_b32 v8, 1, v7")
    A("v_lshrrev_b32 v9, 1, v7")
    A("v_lshl_add_u32 v8, v8, 1, v9")
    A("v_lshlrev_b32 v8, 4, v8")
    A("v_lshl_add_u32 v8, v6, 14, v8")
    A("s_add_u32 s33, s33, s7")
    A(f"v_add_u32 v{vOut}, s33, v8")
    for i in range(128):
        A(f"v_mov_b32 v{ACC+i}, 0")
    A("s_waitcnt lgkmcnt(0)")
    stamp(1)
    for i in range(4):
        A(f"s_mov_b32 s{sP}, s{64+2*i}")
        A(f"s_and_b32 s{sP+1}, s{65+2*i}, 0xffff")
        A(f"s_mov_b32 s{sP+2}, 1024")
        A(f"s_mov_b32 s{sP+3}, 0x20000")
        A(f"buffer_load_dwordx2 v[{96+4*i}:{97+4*i}], v12, s[{sP}:{sP+3}], 0 offen")
        A(f"buffer_load_dwordx2 v[{98+4*i}:{99+4*i}], v12, s[{sP}:{sP+3}], 0 offen offset:32")
    A(f"s_mov_b32 s{sO}, s72")
    A(f"s_and_b32 s{sO+1}, s73, 0xffff")
    A(f"s_mov_b32 s{sO+2}, 0x1000000")
    A(f"s_mov_b32 s{sO+3}, 0x20000")
    A("s_mov_b32 s34, 0x3fb8aa3b")
    A("s_mov_b32 s35, 0x3fb8aa3b")
    A("s_mov_b32 s36, 4096")
    A("s_mov_b32 s37, 8192")
    A("s_mov_b32 s38, 12288")
    A("s_waitcnt vmcnt(0)")
    for e in range(8):
        d = e >> 1
        def unp(dst, src):
            if e & 1: A(f"v_and_b32 v{dst}, 0xffff0000, v{src}")
            else:     A(f"v_lshlrev_b32 v{dst}, 16, v{src}")
        unp(112, 100 + d); unp(113, 104 + d); unp(114, 96 + d); unp(115, 108 + d)
        A("v_add_f32 v112, 0x3727c5ac, v112")
        A("v_sqrt_f32 v112, v112")
        A("s_nop 0")
        A("v_rcp_f32 v112, v112")
        A("s_nop 0")
        A("v_mul_f32 v112, v113, v112")
        A("v_fma_f32 v115, -v114, v112, v115")
        A(f"v_mul_f32 v{PS+e}, s34, v112")
        A(f"v_mul_f32 v{PT+e}, s34, v115")
    A("s_mov_b32 s32, 0")
    A("s_mov_b32 s39, 0")
    A("s_barrier")
    stamp(2)

    q = []
    def lds(tag, s):
        A(s); q.append(tag)
    def wait(tags):
        idx = max([i for i, t in enumerate(q) if t in tags], default=-1)
        if idx < 0: return
        n = len(q) - 1 - idx
        assert n <= 15
        A(f"s_waitcnt lgkmcnt({n})")
        del q[:idx + 1]
    def rdx(s, kk, tagstep):
        v = vXa if kk == 0 else vXb
        lds(("x", tagstep, s), f"ds_read_b128 v[{xf(s)}:{xf(s)+3}], v{v} offset:{XB + (s//8)*16384 + (s%8)*1024}")
    def rdw(st, k, T, h, tagstep):
        v = vW0 if T == 0 else vW1
        r = wf(st, k, T) + 2 * h
        lds(("w", tagstep, k, T), f"ds_read_b64_tr_b16 v[{r}:{r+1}], v{v} offset:{k*8192 + h*4096}")
    worder = [(k, T, h) for k in (1, 0, 2) for T in (0, 1) for h in (0, 1)]
    for (k, T, h) in worder[:4]: rdw(0, k, T, h, 0)
    rdx(0, 0, 0)
    for (k, T, h) in worder[4:]: rdw(0, k, T, h, 0)
    rdx(1, 0, 0); rdx(2, 0, 0)
    A("s_waitcnt lgkmcnt(2)")
    q[:] = [("x", 0, 1), ("x", 0, 2)]
    q0 = None

    def step(kk):
        st = kk
        fill = {}
        def at(s, i, f): fill.setdefault((s, i), []).append(f)
        for s in range(16):
            if s == 5: continue
            if s == 6:
                at(6, 0, lambda: rdx(8, kk, kk)); at(6, 1, lambda: rdx(9, kk, kk)); continue
            t = s + 3
            if t < 16: at(s, 0, lambda t=t: rdx(t, kk, kk))
            else:      at(s, 0, lambda t=t: rdx(t - 16, 1 - kk, 1 - kk))
        def adv():
            A("s_add_u32 s39, s39, 1")
            A("s_cmp_eq_u32 s39, 3")
        def adv2():
            A("s_cselect_b32 s33, -49152, 24576" if False else "s_cselect_b32 s33, s76, s77")
            A("s_cselect_b32 s39, 0, s39")
        def adv3(): A(f"v_add_u32 v{vW0}, s33, v{vW0}")
        def adv4(): A(f"v_add_u32 v{vW1}, s33, v{vW1}")
        at(1, 2, adv); at(1, 3, adv2); at(2, 2, adv3); at(2, 3, adv4)
        tog = vXb if kk == 0 else vXa
        at(3, 2, lambda: A(f"v_xor_b32 v{tog}, 0x8000, v{tog}"))
        wi = 0
        slots = [(6, 3), (6, 5), (7, 2), (7, 4), (8, 2), (8, 4), (9, 2), (9, 4), (10, 2), (10, 4), (11, 2), (11, 4)]
        for (k, T, h), (s, i) in zip(worder, slots):
            at(s, i, lambda k=k, T=T, h=h: rdw(1 - st, k, T, h, 1 - kk))
        for s in range(16):
            ms = [(k, T) for k in (2, 1, 0) for T in (0, 1) if 0 <= s + 1 - k <= 15]
            need = [("x", kk, s)]
            if s == 0: need += [("w", kk, k, T) for k in range(3) for T in range(2)]
            wait(need)
            for i, (k, T) in enumerate(ms):
                a = acc(s + 1 - k, T)
                if not o.nomfma:
                    A(f"v_mfma_f32_16x16x32_bf16 v[{a}:{a+3}], v[{wf(st,k,T)}:{wf(st,k,T)+3}], v[{xf(s)}:{xf(s)+3}], v[{a}:{a+3}]")
                for f in fill.pop((s, i), []): f()
            if s == 5:
                A("s_waitcnt lgkmcnt(0)"); q.clear()
                A("s_barrier")
        assert not fill, fill
    A("s_mov_b32 s76, -49152")
    A("s_mov_b32 s77, 24576")
    A(".p2align 3")
    A.label("L_loop")
    state0 = [("x", 0, 0), ("x", 0, 1), ("x", 0, 2)]
    q[:] = state0
    step(0); step(1)
    assert q == state0, q
    A("s_add_u32 s32, s32, 1")
    A("s_cmp_lt_u32 s32, 8")
    A("s_cbranch_scc1 L_loop")
    stamp(3)
    A("s_waitcnt lgkmcnt(0)")
    A("s_nop 7")
    for s in range(16):
        t = 96 + (s % 2) * 16
        ob = 16 + (s % 4) * 4
        if o.pk:
            for T in range(2):
                for r in (0, 2):
                    e = T * 4 + r
                    A(f"v_pk_fma_f32 v[{t+e}:{t+e+1}], v[{acc(s,T)+r}:{acc(s,T)+r+1}], v[{PS+e}:{PS+e+1}], v[{PT+e}:{PT+e+1}]")
            for e in range(8): A(f"v_exp_f32 v{t+8+e}, -v{t+e}")
            for e in range(0, 8, 2): A(f"v_pk_fma_f32 v[{t+8+e}:{t+9+e}], v[{t+8+e}:{t+9+e}], s[34:35], s[34:35]")
            for e in range(8): A(f"v_rcp_f32 v{t+8+e}, v{t+8+e}")
            for e in range(0, 8, 2): A(f"v_pk_mul_f32 v[{t+e}:{t+e+1}], v[{t+e}:{t+e+1}], v[{t+8+e}:{t+9+e}]")
        else:
            for T in range(2):
                for r in range(4):
                    e = T * 4 + r
                    A(f"v_fma_f32 v{t+e}, v{acc(s,T)+r}, v{PS+e}, v{PT+e}")
            for e in range(8): A(f"v_exp_f32 v{t+8+e}, -v{t+e}")
            for e in range(8): A(f"v_fma_f32 v{t+8+e}, v{t+8+e}, s34, s34")
            for e in range(8): A(f"v_rcp_f32 v{t+8+e}, v{t+8+e}")
            for e in range(8): A(f"v_mul_f32 v{t+e}, v{t+e}, v{t+8+e}")
        for p in range(4): A(f"v_cvt_pk_bf16_f32 v{ob+p}, v{t+2*p}, v{t+2*p+1}")
        A("s_nop 1")
        A(f"v_permlane16_swap_b32 v{ob}, v{ob+2}")
        A(f"v_permlane16_swap_b32 v{ob+1}, v{ob+3}")
        so = ["0", "s36", "s37", "s38"][s // 4]
        if not o.nostore:
            A(f"buffer_store_dwordx4 v[{ob}:{ob+3}], v{vOut}, s[{sO}:{sO+3}], {so} offen offset:{(s%4)*1024} {o.stflag}")
    stamp(4)
    if stamps:
        A("s_waitcnt vmcnt(0)")
        stamp(5)
        A("s_cmp_lg_u32 s3, 0")
        A("s_cbranch_scc1 L_end")
        A(f"s_mov_b32 s{sWS}, s74")
        A(f"s_and_b32 s{sWS+1}, s75, 0xffff")
        A(f"s_mov_b32 s{sWS+2}, 0x100000")
        A(f"s_mov_b32 s{sWS+3}, 0x20000")
        A("s_waitcnt lgkmcnt(0)")
        A("s_lshl_b32 s33, s2, 7")
        A("v_mov_b32 v6, 0")
        for i in range(6):
            base = 40 + 4*i if i < 3 else 80 + 4*(i-3)
            for jx in range(4): A(f"v_mov_b32 v{8+jx}, s{base+jx}")
            A(f"buffer_store_dwordx4 v[8:11], v6, s[{sWS}:{sWS+3}], s33 offen offset:{16*i}")
            A("s_nop 1")
        if o.dbgstamps:
            A("s_cmp_lg_u32 s2, 100")
            A("s_cbranch_scc1 L_end")
            A("s_load_dwordx2 s[74:75], s[0:1], 56")
            A("s_waitcnt lgkmcnt(0)")
            A(f"s_mov_b32 s{sWS}, s74")
            A(f"s_and_b32 s{sWS+1}, s75, 0xffff")
            A(f"s_mov_b32 s{sWS+2}, 256")
            for i in range(5):
                A(f"s_sub_u32 s33, s{42+2*i}, s{40+2*i}")
                A(f"v_mov_b32 v8, s33")
                A(f"buffer_store_dword v8, v6, s[{sWS}:{sWS+3}], 0 offen offset:{4*i}")
                A(f"s_sub_u32 s33, s{82+2*i}, s{80+2*i}")
                A(f"v_mov_b32 v9, s33")
                A(f"buffer_store_dword v9, v6, s[{sWS}:{sWS+3}], 0 offen offset:{32+4*i}")
    A("s_endpgm")

    A.label("L_loader")
    A("s_sub_u32 s3, s3, 4")
    A("v_lshrrev_b32 v6, 4, v0")
    A("v_and_b32 v7, 15, v0")
    A("v_and_b32 v8, 1, v6")
    A("v_lshlrev_b32 v8, 2, v8")
    A("v_or_b32 v8, s3, v8")
    A("v_lshlrev_b32 v8, 1, v8")
    A("v_xor_b32 v8, v8, v7")
    A("v_lshlrev_b32 v8, 4, v8")
    A("v_lshl_add_u32 v8, v6, 13, v8")
    A("s_lshl_b32 s33, s3, 10")
    A("s_add_u32 s34, s33, s6")
    A("v_add_u32 v1, s34, v8")
    A("s_and_b32 s35, s3, 1")
    A("s_lshr_b32 s36, s3, 1")
    A("v_lshrrev_b32 v6, 3, v0")
    A("v_and_b32 v7, 7, v0")
    A("v_lshrrev_b32 v8, 1, v6")
    A("s_lshl_b32 s37, s35, 2")
    A("v_add_u32 v8, s37, v8")
    A("v_xor_b32 v8, v8, v7")
    A("v_lshlrev_b32 v8, 4, v8")
    A("v_lshl_add_u32 v8, v6, 14, v8")
    A("s_lshl_b32 s37, s35, 17")
    A("s_add_u32 s37, s37, s7")
    A("s_lshl_b32 s38, s36, 12")
    A("s_add_u32 s37, s37, s38")
    A("v_add_u32 v2, s37, v8")
    A(f"s_add_u32 s60, s33, {WB}")
    A("s_lshl_b32 s61, s35, 13")
    A("s_add_u32 s61, s61, s38")
    A("s_mov_b32 s62, 0")
    A("s_mov_b32 s63, 0")
    A("s_mov_b32 s59, 0")
    A("s_waitcnt lgkmcnt(0)")
    A(f"s_mov_b32 s{sX}, s28")
    A(f"s_and_b32 s{sX+1}, s29, 0xffff")
    A(f"s_mov_b32 s{sX+2}, 0x1000000")
    A(f"s_mov_b32 s{sX+3}, 0x20000")
    A(f"s_mov_b32 s{sW}, s30")
    A(f"s_and_b32 s{sW+1}, s31, 0xffff")
    A(f"s_mov_b32 s{sW+2}, 0x180000")
    A(f"s_mov_b32 s{sW+3}, 0x20000")
    def group():
        A("s_and_b32 s33, s63, 3")
        A("s_lshl_b32 s33, s33, 14")
        A("s_add_u32 m0, s33, s61")
        A("s_and_b32 s33, s63, 1")
        A("s_lshl_b32 s33, s33, 13")
        A("s_lshr_b32 s34, s63, 1")
        A("s_lshl_b32 s34, s34, 7")
        A("s_add_u32 s33, s33, s34")
        if not o.nodma:
            for i in range(4):
                A(f"buffer_load_dwordx4 v2, s[{sX}:{sX+3}], s33 offen offset:{i*1024} lds")
        for grp in range(6):
            A(f"s_add_u32 m0, s60, {grp*4096}")
            A(f"s_add_u32 s33, s62, {(grp//2)*524288 + (grp%2)*4096}")
            if not o.nodma:
                A(f"buffer_load_dwordx4 v1, s[{sW}:{sW+3}], s33 offen lds")
        A("s_add_u32 s63, s63, 1")
        A("s_add_u32 s62, s62, 32768")
        A("s_add_u32 s60, s60, 24576")
        A("s_add_u32 s59, s59, 1")
        A("s_cmp_eq_u32 s59, 3")
        A("s_cselect_b32 s33, 73728, 0")
        A("s_sub_u32 s60, s60, s33")
        A("s_cmp_eq_u32 s59, 3")
        A("s_cselect_b32 s59, 0, s59")
    A.label("L_ldpro")
    group()
    A("s_cmp_lt_u32 s63, 3")
    A("s_cbranch_scc1 L_ldpro")
    A("s_waitcnt vmcnt(20)")
    A("s_barrier")
    A.label("L_ldloop")
    A("s_waitcnt vmcnt(10)")
    A("s_barrier")
    group()
    A("s_cmp_lt_u32 s63, 16")
    A("s_cbranch_scc1 L_ldloop")
    A("s_waitcnt vmcnt(10)")
    A("s_barrier")
    A("s_waitcnt vmcnt(0)")
    A("s_barrier")
    A("s_barrier")
    A.label("L_end")
    A("s_endpgm")
    txt = HEADER + f"; @launch grid=(256,1,1) block=(512,1,1) lds={LDS}\n" + \
        '.amdgcn_target "amdgcn-amd-amdhsa--gfx950"\n.text\n' + \
        f".globl {KN}\n.p2align 8\n.type {KN},@function\n" + A.text() + \
        f""".section .rodata,"a"
.p2align 6
.amdhsa_kernel {KN}
  .amdhsa_next_free_vgpr 256
  .amdhsa_next_free_sgpr 96
  .amdhsa_accum_offset 256
  .amdhsa_group_segment_fixed_size 0
  .amdhsa_kernarg_size 72
  .amdhsa_user_sgpr_count 2
  .amdhsa_user_sgpr_kernarg_segment_ptr 1
  .amdhsa_system_sgpr_workgroup_id_x 1
  .amdhsa_float_denorm_mode_32 3
.end_amdhsa_kernel
"""
    return txt

if __name__ == "__main__":
    ap = argparse.ArgumentParser()
    ap.add_argument("out")
    ap.add_argument("--stamps", action="store_true")
    ap.add_argument("--dbgstamps", action="store_true")
    ap.add_argument("--nomfma", action="store_true")
    ap.add_argument("--nodma", action="store_true")
    ap.add_argument("--nostore", action="store_true")
    ap.add_argument("--pk", action="store_true")
    ap.add_argument("--stflag", default="")
    o = ap.parse_args()
    open(o.out, "w").write(gen(o))
```

```python
import sys, argparse, re

KN = "standalone__batchnorm__sampling_kernel"
HEADER = """; Kernarg layout (72 bytes, ptrs only, base s[0:1]):
"""
XB, WB = 0, 65536
LDS = WB + 4 * 24576
sX, sW, sO, sP, sWS = 8, 12, 16, 20, 24
vXa, vXb, vW = 1, 2, 3
vDW, vDX1, vDX2, vOut, vPar = 7, 8, 9, 10, 11
TE, OB = 16, 32
PRAW = 96 - 48
PS, PT = 40, 48
PTMP = 56
XR = 64
ACC = 128
def acc(o, T): return ACC + (o * 2 + T) * 4
def wreg(slot, k, T): return slot * 24 + (k * 2 + T) * 4
def xr(b, l): return XR + b * 32 + l * 4

class Op:
    def __init__(self, kind, text, tag=None, earliest=0, need=None, cost=1):
        self.kind, self.text, self.tag, self.earliest, self.need, self.cost = kind, text, tag, earliest, need, cost

def gen(o):
    L = []
    A = lambda s: L.append("    " + s)
    stamps = o.stamps
    def stamp(i):
        if stamps:
            A(f"s_memtime s[{40+2*i}:{41+2*i}]")
            A(f"s_memrealtime s[{80+2*i}:{81+2*i}]")
    L.append(KN + ":")
    stamp(0)
    A("s_cmp_ge_u32 s2, 256")
    A("s_cbranch_scc1 L_end")
    A("s_load_dwordx4 s[28:31], s[0:1], 0")
    A("s_load_dwordx8 s[64:71], s[0:1], 16")
    A("s_load_dwordx2 s[72:73], s[0:1], 48")
    if stamps: A("s_load_dwordx2 s[74:75], s[0:1], 64")
    A("v_lshrrev_b32 v12, 6, v0")
    A("v_and_b32 v0, 63, v0")
    A("v_readfirstlane_b32 s3, v12")
    A("s_and_b32 s4, s2, 7")
    A("s_lshr_b32 s5, s2, 3")
    A("s_and_b32 s6, s5, 3")
    A("s_lshr_b32 s5, s5, 2")
    A("s_lshl_b32 s4, s4, 3")
    A("s_add_u32 s7, s4, s5")
    A("s_lshl_b32 s7, s7, 18")
    A("s_lshl_b32 s6, s6, 8")
    A("v_lshrrev_b32 v12, 4, v0")
    A("v_and_b32 v13, 15, v0")
    A("v_and_b32 v14, 1, v12")
    A("v_lshlrev_b32 v14, 2, v14")
    A("v_or_b32 v14, s3, v14")
    A("v_lshlrev_b32 v14, 1, v14")
    A("v_xor_b32 v14, v14, v13")
    A("v_lshlrev_b32 v14, 4, v14")
    A("v_lshl_add_u32 v14, v12, 13, v14")
    A("s_lshl_b32 s33, s3, 10")
    A("s_add_u32 s34, s33, s6")
    A(f"v_add_u32 v{vDW}, s34, v14")
    A(f"s_add_u32 s60, s33, {WB}")
    A("s_and_b32 s35, s3, 1")
    A("s_lshr_b32 s36, s3, 1")
    A("v_lshrrev_b32 v15, 3, v0")
    A("v_and_b32 v16, 7, v0")
    A("v_lshrrev_b32 v17, 1, v15")
    A("s_lshl_b32 s37, s35, 2")
    A("v_add_u32 v17, s37, v17")
    A("v_xor_b32 v17, v17, v16")
    A("v_lshlrev_b32 v17, 4, v17")
    A("v_lshl_add_u32 v17, v15, 14, v17")
    A("s_lshl_b32 s37, s35, 17")
    A("s_add_u32 s37, s37, s7")
    A("s_lshl_b32 s38, s36, 12")
    A("s_add_u32 s39, s37, s38")
    A(f"v_add_u32 v{vDX1}, s39, v17")
    A("s_lshl_b32 s61, s35, 13")
    A("s_add_u32 s61, s61, s38")
    A("s_lshl_b32 s38, s36, 10")
    A("s_add_u32 s39, s37, s38")
    A("s_add_u32 s39, s39, 512")
    A(f"v_add_u32 v{vDX2}, s39, v17")
    A(f"s_mov_b32 s{sX+2}, 0x1000000")
    A(f"s_mov_b32 s{sX+3}, 0x20000")
    A(f"s_mov_b32 s{sW+2}, 0x180000")
    A(f"s_mov_b32 s{sW+3}, 0x20000")
    A("s_lshl_b32 s33, s3, 6")
    A("s_add_u32 s33, s33, s6")
    A(f"v_lshl_add_u32 v{vPar}, v12, 3, s33")
    def ipf():
        A("s_getpc_b64 s[56:57]")
        A("s_lshl_b32 s58, s3, 13")
        A("v_lshl_add_u32 v62, v0, 7, s58")
        A("global_load_dword v63, v62, s[56:57]")
    if o.ipf == 1: ipf()
    A("s_waitcnt lgkmcnt(0)")
    stamp(1)
    A(f"s_mov_b32 s{sX}, s28")
    A(f"s_and_b32 s{sX+1}, s29, 0xffff")
    A(f"s_mov_b32 s{sW}, s30")
    A(f"s_and_b32 s{sW+1}, s31, 0xffff")

    vm = [("I",)] if o.ipf == 1 else []
    lq = []
    def wsrc(w):
        if w == 0: return 0
        if w == 15: return 15
        return (w + 1) // 2 if w % 2 == 1 else 8 + (w // 2 - 1)
    def wslot_reg(w):
        if w == 0: return 0
        if w == 15: return 0
        return ((w + 1) // 2) % 2 if w % 2 == 1 else 2 + (w // 2 - 1)
    tmpi = [0]
    def dma_w(w):
        r = []
        for grp in range(6):
            st = 52 + tmpi[0] % 4; tmpi[0] += 1
            r.append(([f"s_add_u32 m0, s60, {(w % 4) * 24576 + grp * 4096}",
                       f"s_mov_b32 s{st}, {wsrc(w) * 32768 + (grp // 2) * 524288 + (grp % 2) * 4096}"],
                      f"buffer_load_dwordx4 v{vDW}, s[{sW}:{sW+3}], s{st} offen lds", ("W", w)))
        return r
    def dma_x(q):
        r = []
        st = 52 + tmpi[0] % 4; tmpi[0] += 1
        for i in range(4):
            if q < 8:
                sal = [f"s_add_u32 m0, s61, {(q % 4) * 16384}", f"s_mov_b32 s{st}, {(q >> 1) * 128 + (q & 1) * 8192}"]
                r.append((sal, f"buffer_load_dwordx4 v{vDX1}, s[{sX}:{sX+3}], s{st} offen offset:{i*1024} lds", ("X", q)))
            else:
                sal = [f"s_add_u32 m0, s61, {(q % 4) * 16384 + i * 896}", f"s_mov_b32 s{st}, {(q - 8) * 2048}"]
                r.append((sal, f"buffer_load_dwordx4 v{vDX2}, s[{sX}:{sX+3}], s{st} offen offset:{i*128} lds", ("X", q)))
        return r
    state = {"m0": None, "so": {}}
    def salu_needed(sal):
        out = []
        for s in sal:
            dst = s.split()[1].rstrip(",")
            if state["so"].get(dst) != s: out.append(s)
        return out
    def emit_salu(s):
        A(s); state["so"][s.split()[1].rstrip(",")] = s
    def dma_now(lst):
        for sal, txt, tag in lst:
            for s in salu_needed(sal): emit_salu(s)
            if L[-1].split()[1].startswith("m0"): A("s_nop 0")
            if not o.nodma: A(txt); vm.append(tag)
    dma_now(dma_x(0)); dma_now(dma_w(0))
    for i in range(4):
        A(f"s_mov_b32 s{sP}, s{64+2*i}")
        A(f"s_and_b32 s{sP+1}, s{65+2*i}, 0xffff")
        if i == 0:
            A(f"s_mov_b32 s{sP+2}, 1024")
            A(f"s_mov_b32 s{sP+3}, 0x20000")
        A(f"buffer_load_dwordx2 v[{16+4*i}:{17+4*i}], v{vPar}, s[{sP}:{sP+3}], 0 offen"); vm.append(("P",))
        A(f"buffer_load_dwordx2 v[{18+4*i}:{19+4*i}], v{vPar}, s[{sP}:{sP+3}], 0 offen offset:32"); vm.append(("P",))
    if o.ipf == 2: ipf(); vm.append(("I",))
    dma_now(dma_w(1)); dma_now(dma_x(1)); dma_now(dma_w(2)); dma_now(dma_w(3)); dma_now(dma_x(2))
    A("v_and_b32 v13, 15, v0")
    A("v_lshrrev_b32 v14, 1, v13")
    A("v_xor_b32 v14, v14, v12")
    A("v_lshlrev_b32 v14, 4, v14")
    A("v_and_b32 v15, 7, v13")
    A("v_lshl_add_u32 v14, v15, 7, v14")
    A("v_lshrrev_b32 v15, 3, v13")
    A(f"v_lshl_add_u32 v{vXa}, v15, 13, v14")
    A(f"v_xor_b32 v{vXb}, 64, v{vXa}")
    A("v_lshrrev_b32 v14, 2, v13")
    A("v_and_b32 v15, 3, v0")
    A("v_and_b32 v32, 1, v12")
    A("v_lshl_add_u32 v32, v32, 2, v14")
    A("v_lshlrev_b32 v32, 1, v32")
    A("v_lshrrev_b32 v33, 1, v15")
    A("s_lshl_b32 s34, s3, 2")
    A("v_add_u32 v33, s34, v33")
    A("v_xor_b32 v33, v33, v32")
    A("v_lshlrev_b32 v33, 4, v33")
    A("v_lshl_add_u32 v33, v14, 10, v33")
    A("v_lshl_add_u32 v33, v12, 8, v33")
    A("v_and_b32 v15, 1, v15")
    A("v_lshl_add_u32 v33, v15, 3, v33")
    A(f"v_add_u32 v{vW}, {WB}, v33")
    A(f"v_xor_b32 v{vW+1}, 32, v{vW}")
    A(f"v_add_u32 v{vW+2}, 49152, v{vW}")
    A(f"v_add_u32 v{vW+3}, 49152, v{vW+1}")
    A("v_and_b32 v14, 1, v12")
    A("v_lshrrev_b32 v15, 1, v12")
    A("v_lshl_add_u32 v14, v14, 1, v15")
    A("v_lshlrev_b32 v14, 4, v14")
    A("v_lshl_add_u32 v14, v13, 14, v14")
    A("s_add_u32 s33, s33, s7")
    A(f"v_add_u32 v{vOut}, s33, v14")
    A(f"s_mov_b32 s{sO}, s72")
    A(f"s_and_b32 s{sO+1}, s73, 0xffff")
    A(f"s_mov_b32 s{sO+2}, 0x1000000")
    A(f"s_mov_b32 s{sO+3}, 0x20000")
    A("s_mov_b32 s34, 0x3fb8aa3b")
    A("s_mov_b32 s35, 0x3fb8aa3b")
    A("s_mov_b32 s36, 4096")
    A("s_mov_b32 s37, 8192")
    A("s_mov_b32 s38, 12288")
    def vmwait(tags):
        idx = max([i for i, t in enumerate(vm) if t in tags], default=-1)
        if idx < 0: return None
        n = len(vm) - 1 - idx
        del vm[:idx + 1]
        assert n <= 63
        return n
    def lgwait(tags):
        idx = max([i for i, t in enumerate(lq) if t in tags], default=-1)
        if idx < 0: return None
        n = len(lq) - 1 - idx
        del lq[:idx + 1]
        assert n <= 15, n
        return n
    n = vmwait([("X", 0), ("W", 0), ("P",)])
    if n is not None: A(f"s_waitcnt vmcnt({n})")
    A("s_barrier")
    stamp(2)

    mf = []
    pos = {}
    touched = set()
    def add(oo, T, wslot, k, breg, needs):
        first = (oo, T) not in touched
        touched.add((oo, T))
        mf.append((acc(oo, T), wreg(wslot, k, T), breg, needs, first))
    def p1x(r): return xr(1, r & 7)
    for t in range(8):
        wom = 0 if t == 0 else 2 * t - 1
        for oo in range(16):
            pos[("o", t, oo)] = len(mf)
            Ts = (0, 1) if oo % 2 == 0 else (1, 0)
            for ti, T in enumerate(Ts):
                for k in ((0, 1, 2) if ti == 0 else (2, 1, 0)):
                    r = oo + k - 1
                    if 0 <= r <= 15:
                        add(oo, T, t % 2, k, p1x(r), [("x", t, r), ("w", wom, k, T)])
        pos[("o", t, 16)] = len(mf)
    fom = [2 * l + 2 for l in range(7)] + [15]
    groups = []
    for s in range(14):
        groups += [(s, k) for k in (2, 1, 0) if 0 <= s + 1 - k <= 15]
    groups += [(14, 2), (14, 1), (15, 2), (14, 0), (15, 1)]
    fl = 0; lastT = 0
    done = {}
    for (s, k) in groups:
        pos.setdefault(("s", s), len(mf))
        for T in ((lastT, 1 - lastT)):
            for l in (range(8) if fl == 0 else range(7, -1, -1)):
                add(s + 1 - k, T, wslot_reg(fom[l]), k, xr(s & 1, l), [("y", s, l), ("w", fom[l], k, T)])
            fl ^= 1
            done[(s + 1 - k, T)] = len(mf) - 1
        lastT = 1 - lastT
        pos[("gend", s, k)] = len(mf) - 1
    NM = len(mf)
    firstuse = {}; lastuse = {}
    for i, m in enumerate(mf):
        for tg in m[3]:
            firstuse.setdefault(tg, i); lastuse[tg] = i
    bars = {}
    reads = []
    dmas = []
    def rd_x1(t, r, e):
        v = vXa if t % 2 == 0 else vXb
        q = (t >> 1) * 2 + (r >> 3)
        reads.append(Op("r", f"ds_read_b128 v[{p1x(r)}:{p1x(r)+3}], v{v} offset:{XB + (q%4)*16384 + (r&7)*1024}", ("x", t, r), e))
    def rd_x2(s, l, e):
        v = vXa if l % 2 == 0 else vXb
        q = 8 + (s >> 1)
        d = xr(s & 1, l)
        reads.append(Op("r", f"ds_read_b128 v[{d}:{d+3}], v{v} offset:{XB + (q%4)*16384 + (s&1)*4096 + (l>>1)*1024}", ("y", s, l), e))
    def rd_w(w, e):
        for k in (1, 2, 0):
            for T in (0, 1):
                for h in (0, 1):
                    v = vW + T + (2 if w % 4 >= 2 else 0)
                    r = wreg(wslot_reg(w), k, T) + 2 * h
                    reads.append(Op("t", f"ds_read_b64_tr_b16 a[{r}:{r+1}], v{v} offset:{(w%2)*24576 + k*8192 + h*4096}", ("w", w, k, T), e))
    wtags = lambda w: [("w", w, k, T) for k in range(3) for T in range(2)]
    bgap = {}
    for t in range(8):
        for hh, oo in ((0, o.b0), (1, o.b1)):
            h = 2 * t + hh
            if h == 15: continue
            g = pos[("o", t, oo + 1)] - 1
            bgap[h] = g
            need_vm = [("W", h + 1)]
            need_l = wtags(h)
            if hh == 0:
                need_vm.append(("X", t + 1))
                need_l += [("x", t, r) for r in range(8)] + [("x", t - 1, r) for r in range(8, 16)]
            bars[g] = (need_vm, need_l)
            rd_w(h + 1, g)
            if h + 4 <= 15:
                for d in dma_w(h + 4): dmas.append((g,) + d)
            xl = dma_x(t + 3) if hh == 0 else None
            if hh == 0:
                for d in xl[:2]: dmas.append((g,) + d)
                pend_x = xl[2:]
                if t == 7:
                    for d in pend_x: dmas.append((g,) + d)
            else:
                for d in pend_x: dmas.append((g,) + d)
    for t in range(8):
        for r in range(16):
            if t == 0 and r < 3: continue
            prev = ("x", t, r - 8) if r >= 8 else ("x", t - 1, r + 8)
            e = lastuse.get(prev, -1)
            e = max(e, firstuse[("x", t, r)] - o.xlead)
            if r >= 8: e = max(e, bgap[2 * t])
            elif t > 0: e = max(e, bgap[2 * (t - 1)])
            rd_x1(t, r, e)
    for p in range(1, 8):
        s = 2 * p - 1
        g = pos[("s", s)] + o.b2
        bgap[("p", p)] = g
        bars[g] = ([("X", 8 + p)], [("y", s, l) for l in range(8)] + [("x", 7, r) for r in range(8, 16)])
        if 10 + p <= 15:
            for d in dma_x(10 + p): dmas.append((g,) + d)
    for s in range(16):
        for l in range(8):
            if s == 0: e = max(bgap[14], firstuse[("y", 0, l)] - o.ylead)
            elif s == 1: e = max(lastuse[("x", 7, 8 + l)], pos[("s", 0)])
            else:
                e = lastuse[("y", s - 2, l)]
                if s % 2 == 0: e = max(e, bgap[("p", s // 2)])
            rd_x2(s, l, e)
    dmas.sort(key=lambda d: d[0])
    valu = []
    def V(txt, e, cost=1, kind="v", dep=None): valu.append(Op(kind, txt, None, e, dep, cost))
    for e in range(8):
        d = e >> 1
        b = PTMP + (e % 2) * 4
        for j, src in enumerate((20, 24, 16, 28)):
            V(f"v_and_b32 v{b+j}, 0xffff0000, v{src+d}" if e & 1 else f"v_lshlrev_b32 v{b+j}, 16, v{src+d}", 4)
        V(f"v_add_f32 v{b}, 0x3727c5ac, v{b}", 4)
        V(f"v_sqrt_f32 v{b}, v{b}", 4, 2)
        V(f"v_rcp_f32 v{b}, v{b}", 4, 2)
        V(f"v_mul_f32 v{b+2}, s34, v{b+2}", 4)
        V(f"v_mul_f32 v{b}, v{b+1}, v{b}", 4)
        V(f"v_mul_f32 v{b+3}, s34, v{b+3}", 4)
        V(f"v_mul_f32 v{PS+e}, s34, v{b}", 4)
        V(f"v_fma_f32 v{PT+e}, -v{b+2}, v{b}, v{b+3}", 4)
    order = sorted(range(16), key=lambda oo: max(done[(oo, 0)], done[(oo, 1)]))
    for n_, oo in enumerate(order):
        te = TE + (n_ % 2) * 8; ob = OB + (n_ % 2) * 4
        Ts = sorted((0, 1), key=lambda T: done[(oo, T)])
        for T in Ts:
            e0 = done[(oo, T)] + o.elag
            a = acc(oo, T); tt = te + T * 4
            for r in range(4): V(f"v_fma_f32 v{a+r}, v{a+r}, v{PS+T*4+r}, v{PT+T*4+r}", e0, dep=done[(oo, T)])
            for r in range(4): V(f"v_exp_f32 v{tt+r}, -v{a+r}", e0, 2)
            for r in range(4): V(f"v_fma_f32 v{tt+r}, v{tt+r}, s34, s34", e0)
            for r in range(4): V(f"v_rcp_f32 v{tt+r}, v{tt+r}", e0, 2)
            for r in range(4): V(f"v_mul_f32 v{a+r}, v{a+r}, v{tt+r}", e0)
            for p in range(2): V(f"v_cvt_pk_bf16_f32 v{ob+T*2+p}, v{a+2*p}, v{a+2*p+1}", e0)
        V("s_nop 1", e0, 1, "n")
        V(f"v_permlane16_swap_b32 v{ob}, v{ob+2}", e0)
        V(f"v_permlane16_swap_b32 v{ob+1}, v{ob+3}", e0)
        so = ["0", "s36", "s37", "s38"][oo // 4]
        if not o.nostore:
            V(f"buffer_store_dwordx4 v[{ob}:{ob+3}], v{vOut}, s[{sO}:{sO+3}], {so} offen offset:{(oo%4)*1024} {o.stflag}", e0, 3, "st")
    init = [r for r in []]
    rd_w(0, -1)
    w0 = reads[-12:]; del reads[-12:]
    tmp = len(reads)
    for r in range(3): rd_x1(0, r, -1)
    x0 = reads[tmp:]; del reads[tmp:]
    for op in w0[:4] + x0[:1] + w0[4:8] + x0[1:2] + w0[8:] + x0[2:]:
        A(op.text); lq.append(op.tag)
    issued = {}
    at = {}
    def rdy(v, i):
        return v.earliest <= i and (v.need is None or len(L) - at[v.need] - 1 >= 8)
    def mfma(i):
        at[i] = len(L)
        D, a, b, needs, first = mf[i]
        c = "0" if first else f"v[{D}:{D+3}]"
        if not o.nomfma: A(f"v_mfma_f32_16x16x32_bf16 v[{D}:{D+3}], a[{a}:{a+3}], v[{b}:{b+3}], {c}")
    n = lgwait(mf[0][3]); A(f"s_waitcnt lgkmcnt({n})")
    dl = dict(firstuse)
    for g, (_, tl) in bars.items():
        for tg in tl:
            if tg in dl: dl[tg] = min(dl[tg], g + 1)
    reads.sort(key=lambda r: (dl[r.tag], r.earliest))
    di = 0; vi = 0; staged = False; lastdma = -10; over = 0
    for i in range(NM):
        if stamps and i == pos[("s", 0)]: stamp(3)
        mfma(i)
        slot = 1
        if i in bars:
            assert not [r.tag for r in reads if r.tag in bars[i][1]], (i, [r.tag for r in reads if r.tag in bars[i][1]])
            nv, nl = vmwait(bars[i][0]), lgwait(bars[i][1])
            w = " ".join(x for x in (f"vmcnt({nv})" if nv is not None else "", f"lgkmcnt({nl})" if nl is not None else "") if x)
            if w: A("s_waitcnt " + w); slot += 1
            A("s_barrier"); slot += 1
        if i + 1 < NM:
            for tg in mf[i + 1][3]:
                assert tg in issued or tg in lq or tg[1] == 0 or firstuse[tg] <= i, (tg, i)
            nl = lgwait(mf[i + 1][3])
            if nl is not None: A(f"s_waitcnt lgkmcnt({nl})"); slot += 1
        if staged and slot == 1 and i - lastdma >= o.dspace:
            if not o.nodma: A(dmas[di][2]); vm.append(dmas[di][3])
            di += 1; staged = False; lastdma = i
            continue
        if vi < len(valu) and valu[vi].kind == "st" and valu[vi].earliest <= i and slot == 1:
            A(valu[vi].text); vm.append(("S",)); vi += 1
            continue
        rd = None
        for r in reads:
            if r.earliest <= i: rd = r; break
        vready = vi < len(valu) and rdy(valu[vi], i) and valu[vi].kind != "st"
        if not staged and di < len(dmas) and dmas[di][0] <= i:
            need = salu_needed(dmas[di][1])
            room = (1 if (rd or vready) else 3)
            while need and slot <= room:
                emit_salu(need.pop(0)); slot += 1
            if not need: staged = True
        if vready and valu[vi].kind == "n" and slot == 1:
            A(valu[vi].text); vi += 1; slot += 1
            vready = vi < len(valu) and rdy(valu[vi], i) and valu[vi].kind != "st"
        slot = max(slot, 2)
        if rd and slot <= 3 and len(lq) < 15:
            A(rd.text); lq.append(rd.tag); issued[rd.tag] = i; reads.remove(rd); slot += 1
            if dl[rd.tag] - i < o.warn: print(f"; WARN late read {rd.tag} issued gap {i} deadline {dl[rd.tag]}", file=sys.stderr)
        while vi < len(valu) and rdy(valu[vi], i) and valu[vi].kind == "v" and slot + valu[vi].cost <= 4:
            A(valu[vi].text); slot += valu[vi].cost; vi += 1
        if slot > 4: over += slot - 4
    assert not reads, [r.tag for r in reads]
    assert di == len(dmas)
    print(f"; MFMA {NM}, leftover VALU ops after last MFMA: {len(valu)-vi} (cost {sum(v.cost for v in valu[vi:])}), overflow slots {over}", file=sys.stderr)
    stamp(4)
    A("s_nop 7")
    for v in valu[vi:]: A(v.text)
    if stamps:
        A("s_waitcnt vmcnt(0)")
        stamp(5)
        A("s_cmp_lg_u32 s3, 0")
        A("s_cbranch_scc1 L_end")
        A(f"s_mov_b32 s{sWS}, s74")
        A(f"s_and_b32 s{sWS+1}, s75, 0xffff")
        A(f"s_mov_b32 s{sWS+2}, 0x100000")
        A(f"s_mov_b32 s{sWS+3}, 0x20000")
        A("s_waitcnt lgkmcnt(0)")
        A("s_lshl_b32 s33, s2, 7")
        A("v_mov_b32 v6, 0")
        for i in range(6):
            base = 40 + 4 * i if i < 3 else 80 + 4 * (i - 3)
            for jx in range(4): A(f"v_mov_b32 v{12+jx}, s{base+jx}")
            A(f"buffer_store_dwordx4 v[12:15], v6, s[{sWS}:{sWS+3}], s33 offen offset:{16*i}")
            A("s_nop 1")
    L.append("L_end:")
    A("s_endpgm")
    if o.ipf: A(".fill 2048, 4, 0xbf810000")
    check_hazards(L)
    return HEADER + f"; @launch grid=(256,1,1) block=(256,1,1) lds={LDS}\n" + \
        '.amdgcn_target "amdgcn-amd-amdhsa--gfx950"\n.text\n' + \
        f".globl {KN}\n.p2align 8\n.type {KN},@function\n" + "\n".join(L) + "\n" + \
        f""".section .rodata,"a"
.p2align 6
.amdhsa_kernel {KN}
  .amdhsa_next_free_vgpr 472
  .amdhsa_next_free_sgpr 96
  .amdhsa_accum_offset 256
  .amdhsa_group_segment_fixed_size 0
  .amdhsa_kernarg_size 72
  .amdhsa_user_sgpr_count 2
  .amdhsa_user_sgpr_kernarg_segment_ptr 1
  .amdhsa_system_sgpr_workgroup_id_x 1
  .amdhsa_float_denorm_mode_32 3
.end_amdhsa_kernel
"""

def regs(tok):
    tok = tok.strip().lstrip("-")
    m = re.fullmatch(r"([vas])\[(\d+):(\d+)\]", tok)
    if m: return [(m.group(1), i) for i in range(int(m.group(2)), int(m.group(3)) + 1)]
    m = re.fullmatch(r"([vas])(\d+)", tok)
    if m: return [(m.group(1), int(m.group(2)))]
    if tok == "m0": return [("m", 0)]
    return []
TRANS = ("v_exp_f32", "v_rcp_f32", "v_sqrt_f32", "v_rsq_f32", "v_log_f32")
def check_hazards(L):
    ins = []
    for s in L:
        s = s.strip()
        if not s or s.endswith(":") or s.startswith((";", ".")): continue
        op, _, rest = s.partition(" ")
        ops = [x for x in re.split(r",\s*|\s+", rest) if x]
        rr = [regs(x) for x in ops]
        if op.startswith("buffer_store"): w, r = [], sum(rr, [])
        elif op.startswith("buffer_load"): w, r = ([], sum(rr, []) + [("m", 0)]) if "lds" in ops else (rr[0], sum(rr[1:], []))
        elif op.startswith("v_permlane"): w, r = rr[0] + rr[1], rr[0] + rr[1]
        elif op.startswith(("s_cmp", "s_cbranch", "s_waitcnt", "s_barrier", "s_nop", "s_endpgm", "s_branch", "s_setprio", "s_sleep")): w, r = [], sum(rr, [])
        else: w, r = rr[0] if rr else [], sum(rr[1:], [])
        ins.append((op, set(w), set(r), int(ops[0]) + 1 if op == "s_nop" else 1, s))
    bad = 0
    for i, (op, w, r, _, s) in enumerate(ins):
        dist = 0
        for j in range(i + 1, min(i + 12, len(ins))):
            op2, w2, r2, n2, s2 = ins[j]
            valu2 = op2.startswith("v_") and not op2.startswith("v_mfma")
            need = 0
            if op.startswith("v_mfma"):
                if op2.startswith("v_mfma"):
                    ab = set(sum([regs(x) for x in re.split(r",\s*", s2.partition(" ")[2])[1:3]], []))
                    if w & ab: need = 8
                elif (w & (r2 | w2)): need = 8
                if valu2 and (w2 & w): need = 8
            elif op.startswith("v_"):
                if op2.startswith("v_mfma") and (w & r2): need = 2
                if op in TRANS and valu2 and op2 not in TRANS and (w & r2): need = 1
                if op2.startswith("v_permlane") and (w & r2): need = 2
                if op2.startswith("v_readfirstlane") and (w & r2): need = 1
                if op == "v_readfirstlane_b32" and valu2 and (w & r2): need = 2
                if op == "v_readfirstlane_b32" and op2.startswith("buffer") and (w & r2): need = 5
            elif op.startswith("buffer_store") and valu2 and "x4" in op:
                data = set(regs(re.split(r",\s*", s.partition(" ")[2])[0]))
                if data & w2: need = 2
            elif op.startswith("s_") and ("m", 0) in w and op2.startswith("buffer_load") and ("m", 0) in r2: need = 1
            if dist < need:
                print(f"HAZARD need {need} have {dist}: [{s}] -> [{s2}]", file=sys.stderr); bad += 1
            dist += n2
    assert bad == 0

if __name__ == "__main__":
    ap = argparse.ArgumentParser()
    ap.add_argument("out")
    ap.add_argument("--ipf", type=int, default=2)
    for f in ("stamps", "nomfma", "nodma", "nostore"): ap.add_argument("--" + f, action="store_true")
    ap.add_argument("--stflag", default="sc1")
    ap.add_argument("--b0", type=int, default=5)
    ap.add_argument("--b1", type=int, default=13)
    ap.add_argument("--b2", type=int, default=1)
    ap.add_argument("--xlead", type=int, default=16)
    ap.add_argument("--ylead", type=int, default=40)
    ap.add_argument("--elag", type=int, default=2)
    ap.add_argument("--dspace", type=int, default=3)
    ap.add_argument("--warn", type=int, default=8)
    o = ap.parse_args()
    open(o.out, "w").write(gen(o))
```

```python
import re, sys
def regs(tok):
    tok = tok.strip().lstrip("-")
    m = re.fullmatch(r"([vas])\[(\d+):(\d+)\]", tok)
    if m: return [(m.group(1), i) for i in range(int(m.group(2)), int(m.group(3)) + 1)]
    m = re.fullmatch(r"([vas])(\d+)", tok)
    if m: return [(m.group(1), int(m.group(2)))]
    if tok == "m0": return [("m", 0)]
    return []
TRANS = ("v_exp_f32", "v_rcp_f32", "v_sqrt_f32", "v_rsq_f32", "v_log_f32")
def check_hazards(L):
    ins = []
    for s in L:
        s = s.strip()
        if not s or s.endswith(":") or s.startswith((";", ".")): continue
        op, _, rest = s.partition(" ")
        ops = [x for x in re.split(r",\s*|\s+", rest) if x]
        rr = [regs(x) for x in ops]
        if op.startswith("buffer_store"): w, r = [], sum(rr, [])
        elif op.startswith("global_load"): w, r = rr[0], sum(rr[1:], [])
        elif op.startswith("buffer_load"): w, r = ([], sum(rr, []) + [("m", 0)]) if "lds" in ops else (rr[0], sum(rr[1:], []))
        elif op.startswith("v_permlane"): w, r = rr[0] + rr[1], rr[0] + rr[1]
        elif op.startswith(("s_cmp", "s_cbranch", "s_waitcnt", "s_barrier", "s_nop", "s_endpgm", "s_branch", "s_setprio", "s_sleep")): w, r = [], sum(rr, [])
        else: w, r = rr[0] if rr else [], sum(rr[1:], [])
        ins.append((op, set(w), set(r), int(ops[0]) + 1 if op == "s_nop" else 1, s))
    bad = 0
    for i, (op, w, r, _, s) in enumerate(ins):
        dist = 0
        for j in range(i + 1, min(i + 12, len(ins))):
            op2, w2, r2, n2, s2 = ins[j]
            valu2 = op2.startswith("v_") and not op2.startswith("v_mfma")
            need = 0
            if op.startswith("v_mfma"):
                if op2.startswith("v_mfma"):
                    ab = set(sum([regs(x) for x in re.split(r",\s*", s2.partition(" ")[2])[1:3]], []))
                    if w & ab: need = 8
                elif (w & (r2 | w2)): need = 8
                if valu2 and (w2 & w): need = 8
            elif op.startswith("v_"):
                if op2.startswith("v_mfma") and (w & r2): need = 2
                if op in TRANS and valu2 and op2 not in TRANS and (w & r2): need = 1
                if op2.startswith("v_permlane") and (w & r2): need = 2
                if op2.startswith("v_readfirstlane") and (w & r2): need = 1
                if op == "v_readfirstlane_b32" and valu2 and (w & r2): need = 2
                if op == "v_readfirstlane_b32" and op2.startswith("buffer") and (w & r2): need = 5
            elif op.startswith("buffer_store") and valu2 and "x4" in op:
                data = set(regs(re.split(r",\s*", s.partition(" ")[2])[0]))
                if data & w2: need = 2
            elif op.startswith("s_") and ("m", 0) in w and op2.startswith("buffer_load") and ("m", 0) in r2: need = 1
            if dist < need:
                print(f"HAZARD need {need} have {dist}: [{s}] -> [{s2}]", file=sys.stderr); bad += 1
            dist += n2
    assert bad == 0
```

```python
import sys, argparse, re
from hazard import check_hazards

KN = "standalone__batchnorm__sampling_kernel"
HEADER = """; Kernarg layout (72 bytes, ptrs only, base s[0:1]):
"""
WB = 65536
WB2 = WB + 8192
LDS = WB + 4 * 24576
sX, sW, sO = 8, 12, 16
sPar = (20, 24, 76, 92)
vXa, vXb, vW = 1, 2, 3
vDW, vDX1, vDX2, vOut, vPar = 7, 8, 9, 10, 11
vXa2, vXb2, vPX, vPW = 12, 13, 14, 15
TE, OB = 16, 32
vDump, vI = 38, 39
PS, PT = 40, 48
PTMP = 56
XR = 64
ACC = 128
def acc(o, T): return ACC + (o * 2 + T) * 4
def wreg(slot, k, T): return slot * 24 + (k * 2 + T) * 4
def xr(b, l): return XR + b * 32 + l * 4
SEQ = []
def wsrc(w): return SEQ[w]
def wslot_reg(w): return SEQ[w] % 2 if SEQ[w] < 8 else 0 if SEQ[w] == 15 else SEQ[w] - 6
def om(c): return SEQ.index(c)
PL = 3 * 16384
XBASE = {q: (q % 4) * 16384 for q in range(11)}
XBASE.update({11: WB2, 12: WB + 24576, 13: WB + 49152, 14: 3 * 16384, 15: 0})

class Op:
    def __init__(self, kind, text, tag=None, earliest=0, need=None, cost=1, sal=()):
        self.kind, self.text, self.tag, self.earliest, self.need, self.cost, self.sal = kind, text, tag, earliest, need, cost, list(sal)

def gen(o):
    if o.defer == 0: hs = {2 * t: t + 1 for t in range(7)}; hs.update({2 * l + 1: 8 + l for l in range(7)}); hs[14] = 15
    else:            hs = {2 * t: t + 1 for t in range(7)}; hs.update({2 * l + 3: 8 + l for l in range(6)}); hs[14] = 14; hs[15] = 15
    SEQ[:] = [0] + [hs[h] for h in sorted(hs)]
    HS = sorted(hs)
    L = []
    A = lambda s: L.append("    " + s)
    def pad(i):
        if o.pad and int(o.pad.split(":")[0]) == i:
            n = int(float(o.pad.split(":")[1]) * 100)
            if i == 5: A("s_waitcnt vmcnt(0)")
            L.append(f"L_pad{i}:")
            for s in ("s_sleep 1", "s_memrealtime s[96:97]", "s_waitcnt lgkmcnt(0)", "s_sub_u32 s96, s96, s98",
                      f"s_cmp_lt_u32 s96, {n}", f"s_cbranch_scc1 L_pad{i}"): A(s)
    TR = list(range(40, 52, 2)) + list(range(80, 92, 2)) + [96, 98, 100, 64, 66, 68, 70, 28, 30, 72]
    tn = [0]
    def tstamp():
        A(f"s_memtime s[{TR[tn[0]]}:{TR[tn[0]]+1}]"); tn[0] += 1
    def stamp(i):
        if o.pad and i == 0: A("s_memrealtime s[98:99]")
        if i != 5: pad(i)
        if o.traj:
            if i in (0, 2, 4, 5): tstamp()
        elif o.stamps:
            A(f"s_memtime s[{40+2*i}:{41+2*i}]")
            A(f"s_memrealtime s[{80+2*i}:{81+2*i}]")
    L.append(KN + ":")
    stamp(0)
    A("s_load_dwordx4 s[28:31], s[0:1], 0")
    A("s_load_dwordx8 s[64:71], s[0:1], 16")
    A("s_load_dwordx2 s[72:73], s[0:1], 48")
    if o.stamps: A("s_load_dwordx2 s[74:75], s[0:1], 64")
    A("s_cmp_ge_u32 s2, 256")
    A("s_cbranch_scc1 L_end")
    A("v_lshrrev_b32 v56, 6, v0")
    A("v_and_b32 v0, 63, v0")
    A("v_readfirstlane_b32 s3, v56")
    A("s_and_b32 s4, s2, 7")
    A("s_lshr_b32 s5, s2, 3")
    A("s_and_b32 s6, s5, 3")
    A("s_lshr_b32 s5, s5, 2")
    A("s_lshl_b32 s7, s4, 3")
    A("s_add_u32 s7, s7, s5")
    A("s_lshl_b32 s7, s7, 18")
    A("s_lshl_b32 s62, s6, 16")
    A("s_lshl_b32 s6, s6, 8")
    if o.rot == 0: A("s_mov_b32 s4, 0")
    if o.rot >= 2:
        A("s_lshr_b32 s32, s2, 3")
        A("s_and_b32 s33, s32, 1")
        if o.rot == 3: A("s_lshl_b32 s33, s33, 1")
        A("s_and_b32 s32, s32, 2")
        if o.rot != 4: A("s_lshl_b32 s32, s32, 1")
        A("s_xor_b32 s4, s4, s33")
        A("s_xor_b32 s4, s4, s32")
    A("s_lshl_b32 s59, s4, 16")
    A("s_lshl_b32 s58, s4, 7")
    A("v_lshrrev_b32 v56, 4, v0")
    A("v_and_b32 v57, 15, v0")
    A("v_and_b32 v58, 1, v56")
    A("v_lshlrev_b32 v58, 2, v58")
    A("v_or_b32 v58, s3, v58")
    A("v_lshlrev_b32 v58, 1, v58")
    A("v_xor_b32 v58, v58, v57")
    A("v_lshlrev_b32 v58, 4, v58")
    A("v_lshl_add_u32 v58, v56, 13, v58")
    A("s_lshl_b32 s33, s3, 10")
    A("s_add_u32 s34, s33, s6")
    A(f"v_add_u32 v{vDW}, s34, v58")
    A(f"s_add_u32 s60, s33, {WB}")
    A("s_and_b32 s35, s3, 1")
    A("s_lshr_b32 s36, s3, 1")
    A("v_lshrrev_b32 v59, 3, v0")
    A("v_and_b32 v60, 7, v0")
    A("v_lshrrev_b32 v61, 1, v59")
    A("s_lshl_b32 s37, s35, 2")
    A("v_add_u32 v61, s37, v61")
    A("v_xor_b32 v61, v61, v60")
    A("v_lshlrev_b32 v61, 4, v61")
    A("v_lshl_add_u32 v61, v59, 14, v61")
    A("s_lshl_b32 s37, s35, 17")
    A("s_add_u32 s37, s37, s7")
    A("s_lshl_b32 s38, s36, 12")
    A("s_add_u32 s39, s37, s38")
    A(f"v_add_u32 v{vDX1}, s39, v61")
    A("s_lshl_b32 s61, s35, 13")
    A("s_add_u32 s61, s61, s38")
    A(f"s_mov_b32 s{sX+2}, 0x1000000")
    A(f"s_mov_b32 s{sX+3}, 0x20000")
    A(f"s_mov_b32 s{sW+2}, 0x180000")
    A(f"s_mov_b32 s{sW+3}, 0x20000")
    A("s_lshl_b32 s39, s3, 14")
    A("s_add_u32 s62, s62, s39")
    A("s_add_u32 s62, s62, s7")
    A("v_lshl_add_u32 v59, v57, 10, s62")
    A(f"v_lshl_add_u32 v{vPX}, v56, 28, v59")
    A("s_lshr_b32 s39, s4, 2")
    A("v_xor_b32 v59, s39, v56")
    A("v_and_b32 v59, 1, v59")
    A("v_lshlrev_b32 v59, 18, v59")
    A("v_lshrrev_b32 v60, 2, v57")
    A("v_lshl_add_u32 v59, v60, 19, v59")
    A("v_lshrrev_b32 v60, 1, v56")
    A("v_lshl_add_u32 v59, v60, 21, v59")
    A("v_and_b32 v60, 1, v0")
    A("v_lshl_add_u32 v59, v60, 7, v59")
    A("v_and_b32 v60, 2, v0")
    A("v_lshl_add_u32 v59, v60, 9, v59")
    A("s_lshl_b32 s5, s5, 13")
    A("s_add_u32 s5, s5, s6")
    A("s_lshl_b32 s39, s3, 11")
    A("s_add_u32 s5, s5, s39")
    A(f"v_add_u32 v{vPW}, s5, v59")
    A("s_and_b32 s63, s59, 0x30000")
    A("s_getpc_b64 s[56:57]")
    if o.idist:
        A("s_lshr_b32 s39, s2, 3")
        A("s_lshl_b32 s39, s39, 2")
        A("s_add_u32 s39, s39, s3")
        A("s_lshl_b32 s39, s39, 8")
        A(f"v_and_b32 v{vI}, 1, v0")
        A(f"v_lshl_add_u32 v{vI}, v{vI}, 7, s39")
    else:
        A("s_lshl_b32 s39, s3, 13")
        A(f"v_lshl_add_u32 v{vI}, v0, 7, s39")
    A("s_waitcnt lgkmcnt(0)")
    stamp(1)
    A(f"s_mov_b32 s{sX}, s28")
    A(f"s_and_b32 s{sX+1}, s29, 0xffff")
    A(f"s_mov_b32 s{sW}, s30")
    A(f"s_and_b32 s{sW+1}, s31, 0xffff")

    vm, lq = [], []
    tmpi = [0]
    def stmp():
        tmpi[0] += 1
        return 52 + tmpi[0] % 4
    def items(tok):
        r = []
        if tok[0] == "w":
            w = int(tok[1:])
            for grp in range(6):
                st = stmp()
                r.append(Op("d", f"buffer_load_dwordx4 v{vDW}, s[{sW}:{sW+3}], s{st} offen {o.wflag} lds", ("W", w),
                            sal=[f"s_add_u32 m0, s60, {(w % 4) * 24576 + grp * 4096}",
                                 f"s_xor_b32 s{st}, s59, {wsrc(w) * 32768 + (grp // 2) * 524288 + (grp % 2) * 4096}"]))
        elif tok[0] == "x":
            q = int(tok[1:]); st = stmp()
            for i in range(4):
                if q < 8:
                    r.append(Op("d", f"buffer_load_dwordx4 v{vDX1}, s[{sX}:{sX+3}], s{st} offen offset:{i*1024} {o.xflag} lds", ("X", q),
                                sal=[f"s_add_u32 m0, s61, {XBASE[q]}", f"s_xor_b32 s{st}, s58, {(q >> 1) * 128 + (q & 1) * 8192}"]))
                else:
                    st = stmp()
                    r.append(Op("d", f"buffer_load_dwordx4 v{vDX2}, s[{sX}:{sX+3}], s{st} offen {o.xflag} lds", ("X", q),
                                sal=[f"s_add_u32 m0, s61, {XBASE[q] + i * 1024}", f"s_xor_b32 s{st}, s58, {(q - 8) * 2048 + 512 + i * 128}"]))
        elif tok[0] == "a":
            u = int(tok[1:]); st = stmp()
            r.append(Op("d", f"buffer_load_dword v{vDump}, v{vPX}, s[{sX}:{sX+3}], s{st} offen {o.xflag}", ("F",), sal=[f"s_xor_b32 s{st}, s58, {u*128}"]))
            if o.pfhalf: r.append(Op("d", f"buffer_load_dword v{vDump}, v{vPX}, s[{sX}:{sX+3}], s{st} offen offset:64 {o.xflag}", ("F",), sal=[f"s_xor_b32 s{st}, s58, {u*128}"]))
        elif tok[0] == "b":
            j = int(tok[1:]); st = stmp()
            r.append(Op("d", f"buffer_load_dword v{vDump}, v{vPW}, s[{sW}:{sW+3}], s{st} offen {o.wflag}", ("F",), sal=[f"s_xor_b32 s{st}, s63, {j*65536}"]))
            if o.pfhalf: r.append(Op("d", f"buffer_load_dword v{vDump}, v{vPW}, s[{sW}:{sW+3}], s{st} offen offset:64 {o.wflag}", ("F",), sal=[f"s_xor_b32 s{st}, s63, {j*65536}"]))
        elif tok == "I":
            r.append(Op("d", f"global_load_dword v{vDump}, v{vI}, s[56:57]", ("F",)))
        elif tok == "L":
            r.append(Op("d", f"buffer_load_dword v{vPar}, s[20:23], s6 offen lds", ("P",), sal=[f"s_add_u32 m0, s39, {PL}"]))
        elif tok == "P":
            for i in range(4):
                for h in range(2):
                    r.append(Op("d", f"buffer_load_dwordx2 v[{16+4*i+2*h}:{17+4*i+2*h}], v{vPar}, s[{sPar[i]}:{sPar[i]+3}], 0 offen offset:{32*h}", ("P",)))
        return r
    have = {}
    def salu_needed(sal): return [s for s in sal if have.get(s.split()[1]) != s]
    def emit_salu(s): A(s); have[s.split()[1]] = s
    def issue(op):
        if o.nodma and "lds" in op.text: return
        A(op.text); vm.append(op.tag)
    pre, _, post = o.porder.partition("|")
    useL = "L" in pre.split(",")
    def lsetup():
        A("s_cmp_eq_u32 s3, 1")
        A("s_cselect_b64 s[64:65], s[66:67], s[64:65]")
        A("s_cmp_eq_u32 s3, 2")
        A("s_cselect_b64 s[64:65], s[68:69], s[64:65]")
        A("s_cmp_eq_u32 s3, 3")
        A("s_cselect_b64 s[64:65], s[70:71], s[64:65]")
        A("s_mov_b32 s20, s64")
        A("s_and_b32 s21, s65, 0xffff")
        A("s_mov_b32 s22, 1024")
        A("s_mov_b32 s23, 0x20000")
        A(f"v_lshlrev_b32 v{vPar}, 2, v0")
        A("s_lshl_b32 s39, s3, 8")
    def parsetup():
        A("s_lshl_b32 s33, s3, 6")
        A("s_add_u32 s33, s33, s6")
        A(f"v_lshl_add_u32 v{vPar}, v56, 3, s33")
        for i in range(4):
            A(f"s_mov_b32 s{sPar[i]}, s{64+2*i}")
            A(f"s_and_b32 s{sPar[i]+1}, s{65+2*i}, 0xffff")
            A(f"s_mov_b32 s{sPar[i]+2}, 1024")
            A(f"s_mov_b32 s{sPar[i]+3}, 0x20000")
    def run(toks):
        for tok in toks:
            if tok == "P": parsetup()
            if tok == "L": lsetup()
            for op in items(tok):
                for s in salu_needed(op.sal): emit_salu(s)
                if L[-1].split()[1].startswith("m0"): A("s_nop 0")
                issue(op)
    ptoks = [x for x in pre.split(",") if x]
    cut = ptoks.index("S") if "S" in ptoks else len(ptoks)
    run(ptoks[:cut])
    A("s_lshl_b32 s38, s36, 10")
    A("s_add_u32 s39, s37, s38")
    A(f"v_add_u32 v{vDX2}, s39, v61")
    if useL:
        A("s_lshl_b32 s33, s3, 6")
        A(f"v_lshl_add_u32 v37, v56, 3, s33")
        A("s_add_u32 s33, s33, s6")
    elif "P" not in pre.split(","): parsetup()
    A("v_lshrrev_b32 v58, 1, v57")
    A("v_xor_b32 v58, v58, v56")
    A("v_lshlrev_b32 v58, 4, v58")
    A("v_and_b32 v59, 7, v57")
    A("v_lshl_add_u32 v58, v59, 7, v58")
    A("v_lshrrev_b32 v59, 3, v57")
    A(f"v_lshl_add_u32 v{vXa}, v59, 13, v58")
    A(f"v_xor_b32 v{vXb}, 64, v{vXa}")
    A(f"v_add_u32 v{vXa2}, {WB2}, v{vXa}")
    A(f"v_add_u32 v{vXb2}, {WB2}, v{vXb}")
    A("v_lshrrev_b32 v58, 2, v57")
    A("v_and_b32 v59, 3, v0")
    A("v_and_b32 v62, 1, v56")
    A("v_lshl_add_u32 v62, v62, 2, v58")
    A("v_lshlrev_b32 v62, 1, v62")
    A("v_lshrrev_b32 v63, 1, v59")
    A("s_lshl_b32 s34, s3, 2")
    A("v_add_u32 v63, s34, v63")
    A("v_xor_b32 v63, v63, v62")
    A("v_lshlrev_b32 v63, 4, v63")
    A("v_lshl_add_u32 v63, v58, 10, v63")
    A("v_lshl_add_u32 v63, v56, 8, v63")
    A("v_and_b32 v59, 1, v59")
    A("v_lshl_add_u32 v63, v59, 3, v63")
    A(f"v_add_u32 v{vW}, {WB}, v63")
    A(f"v_xor_b32 v{vW+1}, 32, v{vW}")
    A(f"v_add_u32 v{vW+2}, 49152, v{vW}")
    A(f"v_add_u32 v{vW+3}, 49152, v{vW+1}")
    A("v_and_b32 v58, 1, v56")
    A("v_lshrrev_b32 v59, 1, v56")
    A("v_lshl_add_u32 v58, v58, 1, v59")
    A("v_lshlrev_b32 v58, 4, v58")
    A("v_lshl_add_u32 v58, v57, 14, v58")
    A("s_add_u32 s33, s33, s7")
    A(f"v_add_u32 v{vOut}, s33, v58")
    A(f"s_mov_b32 s{sO}, s72")
    A(f"s_and_b32 s{sO+1}, s73, 0xffff")
    A(f"s_mov_b32 s{sO+2}, 0x1000000")
    A(f"s_mov_b32 s{sO+3}, 0x20000")
    A("s_mov_b32 s34, 0x3fb8aa3b")
    A("s_mov_b32 s36, 4096")
    A("s_mov_b32 s37, 8192")
    A("s_mov_b32 s38, 12288")
    run(ptoks[cut + 1:])
    def qwait(q, tags, mx):
        idx = max([i for i, t in enumerate(q) if t in tags], default=-1)
        if idx < 0: return None
        n = len(q) - 1 - idx
        del q[:idx + 1]
        assert n <= mx, n
        return n
    vmwait = lambda tags: qwait(vm, tags, 63)
    lgwait = lambda tags: qwait(lq, tags, 15)
    x1early = "x1" in o.g0.split(",")
    n = vmwait([("X", 0), ("W", 0)] + ([("X", 1)] if x1early else []) + ([("P",)] if useL and o.pbar < 0 else []))
    if n is not None: A(f"s_waitcnt vmcnt({n})")
    A("s_barrier")
    stamp(2)

    mf, pos, touched = [], {}, set()
    def add(oo, T, wslot, k, breg, needs):
        mf.append((acc(oo, T), wreg(wslot, k, T), breg, needs, (oo, T) not in touched))
        touched.add((oo, T))
    def p1x(r): return xr(1, r & 7)
    for t in range(8):
        wom = om(t)
        for oo in range(16):
            for ti, T in enumerate((0, 1) if oo % 2 == 0 else (1, 0)):
                for k in ((0, 1, 2) if ti == 0 else (2, 1, 0)):
                    r = oo + k - 1
                    if 0 <= r <= 15: add(oo, T, t % 2, k, p1x(r), [("x", t, r), ("w", wom, k, T)])
            pos[("o", 16 * t + oo)] = len(mf) - 1
    fom = [om(8 + l) for l in range(8)]
    groups = []
    for s in range(14): groups += [(s, k) for k in (2, 1, 0) if 0 <= s + 1 - k <= 15]
    groups += [(14, 2), (14, 1), (15, 2), (14, 0), (15, 1)]
    fl = lastT = 0
    done = {}
    for (s, k) in groups:
        pos.setdefault(("s", s), len(mf))
        for T in (lastT, 1 - lastT):
            for l in (range(8) if fl == 0 else range(7, -1, -1)):
                add(s + 1 - k, T, wslot_reg(fom[l]), k, xr(s & 1, l), [("y", s, l), ("w", fom[l], k, T)])
            fl ^= 1
            done[(s + 1 - k, T)] = len(mf) - 1
        lastT = 1 - lastT
    NM = len(mf)
    firstuse, lastuse = {}, {}
    for i, m in enumerate(mf):
        for tg in m[3]: firstuse.setdefault(tg, i); lastuse[tg] = i
    bp = dict((int(a), int(b)) for a, b in (x.split(":") for x in o.bpos.split(",") if x))
    H = {h: pos[("o", bp.get(h, 16 * (h // 2) + (o.b1 if h % 2 else o.b0)))] for h in HS}
    Q = [pos[("s", s)] + o.b2 for s in (1, 3, o.q3)]
    allb = [H[h] for h in HS] + Q
    assert allb == sorted(allb)
    wtags = lambda w: [("w", w, k, T) for k in range(3) for T in range(2)]
    def xtags(q):
        if q < 8: return [("x", t, r) for t in (q & ~1, q | 1) for r in range(8 * (q & 1), 8 * (q & 1) + 8)]
        return [("y", s, l) for s in (2 * (q - 8), 2 * (q - 8) + 1) for l in range(8)]
    land, issue_at, prev = {}, {}, {}
    early = set(x.partition("@")[0] for x in (pre + "," + post).split(","))
    for w in range(16):
        land[("W", w)] = -1 if w == 0 else allb[w - 1]
        if w >= 4: issue_at[f"w{w}"] = allb[w - 4]; prev[f"w{w}"] = wtags(w - 4)
        elif f"w{w}" not in early: issue_at[f"w{w}"] = allb[0]; prev[f"w{w}"] = []
    for q in range(16):
        land[("X", q)] = -1 if q == 0 or (q == 1 and x1early) else H[2 * q - 2] if q <= 8 else Q[0] if q == 9 else Q[1] if q <= 13 else Q[2]
    for q in range(3, 11): issue_at[f"x{q}"] = H[2 * (q - 3)]; prev[f"x{q}"] = xtags(q - 4) if q >= 4 else []
    for q, w in ((11, 12), (12, 13), (13, 14)): issue_at[f"x{q}"] = allb[w]; prev[f"x{q}"] = wtags(w)
    for q, p in ((14, 7), (15, 8)): issue_at[f"x{q}"] = Q[0]; prev[f"x{q}"] = xtags(p)
    bars = {g: ([t for t, b in land.items() if b == g], sum([prev[k] for k, b in issue_at.items() if b == g], [])) for g in allb}
    if o.pbar >= 0: bars[H[o.pbar]][0].append(("P",))
    pe = H[o.pbar] if o.pbar >= 0 else -1
    ptags = [("p", i) for i in range(8)]
    if useL:
        rel = issue_at["x3"] = allb[allb.index(pe) + 1] if pe >= 0 else allb[0]
        bars[rel][1].extend(ptags)
    dmas = []
    for tok in filter(None, post.split(",")):
        tok, _, e = tok.partition("@")
        for j, op in enumerate(items(tok)): op.earliest = -1 if not e else int(e) + j * o.dspace1; dmas.append(op)
    pf = dict(x.split("@") for x in o.pf.split(",") if x)
    for g in allb:
        for k in sorted([k for k, b in issue_at.items() if b == g], key=lambda k: land[(k[0].upper(), int(k[1:]))]):
            its = items(k)
            for i, op in enumerate(its):
                op.earliest = g
                if k[0] == "x" and int(k[1:]) <= 9 and i >= 2 and o.xsplit: op.earliest = allb[allb.index(g) + 1] + 0.5
                dmas.append(op)
        for tok, h in pf.items():
            if H[int(h)] == g:
                for op in items(tok): op.earliest = g + 0.7; dmas.append(op)
    dmas.sort(key=lambda d: d.earliest)
    reads = []
    def rd_x(tag, dst, q, off, kk, e):
        b = XBASE[q]
        v = (vXa, vXb)[kk] if b < WB else (vXa2, vXb2)[kk]
        reads.append(Op("r", f"ds_read_b128 v[{dst}:{dst+3}], v{v} offset:{(b if b < WB else b - WB2) + off}", tag, max(e, land[("X", q)])))
    for w in range(16):
        for k in (1, 2, 0):
            for T in (0, 1):
                for h in (0, 1):
                    r = wreg(wslot_reg(w), k, T) + 2 * h
                    reads.append(Op("t", f"ds_read_b64_tr_b16 a[{r}:{r+1}], v{vW + T + (2 if w % 4 >= 2 else 0)} offset:{(w%2)*24576 + k*8192 + h*4096}",
                                    ("w", w, k, T), land[("W", w)]))
    for t in range(8):
        for r in range(16):
            e = max(lastuse.get(("x", t, r - 8) if r >= 8 else ("x", t - 1, r + 8), -1), firstuse[("x", t, r)] - o.xlead)
            rd_x(("x", t, r), p1x(r), (t & ~1) + (r >> 3), (r & 7) * 1024, t & 1, e)
    for s in range(16):
        for l in range(8):
            e = firstuse[("y", 0, l)] - o.ylead if s == 0 else max(lastuse[("x", 7, 8 + l)], pos[("s", 0)]) if s == 1 else lastuse[("y", s - 2, l)]
            rd_x(("y", s, l), xr(s & 1, l), 8 + (s >> 1), (s & 1) * 4096 + (l >> 1) * 1024, l & 1, e)
    if useL:
        for i in range(8):
            reads.append(Op("r", f"ds_read_b64 v[{16+2*i}:{17+2*i}], v37 offset:{PL + (i >> 1) * 256 + (i & 1) * 32}", ("p", i), pe))
            firstuse[("p", i)] = NM
    dl = dict(firstuse)
    for g, (_, tl) in bars.items():
        for tg in tl: dl[tg] = min(dl[tg], g + 1)
    reads.sort(key=lambda r: (dl[r.tag], r.earliest))
    valu = []
    def V(txt, e, cost=1, kind="v", dep=None): valu.append(Op(kind, txt, None, e, dep, cost))
    if useL: pe = rel
    for e in range(8):
        d = e >> 1; b = PTMP + (e % 2) * 4
        for j, src in enumerate((20, 24, 16, 28)):
            V(f"v_and_b32 v{b+j}, 0xffff0000, v{src+d}" if e & 1 else f"v_lshlrev_b32 v{b+j}, 16, v{src+d}", pe)
        V(f"v_add_f32 v{b}, 0x3727c5ac, v{b}", pe)
        V(f"v_sqrt_f32 v{b}, v{b}", pe, 2)
        V(f"v_rcp_f32 v{b}, v{b}", pe, 2)
        V(f"v_mul_f32 v{b+2}, s34, v{b+2}", pe)
        V(f"v_mul_f32 v{b}, v{b+1}, v{b}", pe)
        V(f"v_mul_f32 v{b+3}, s34, v{b+3}", pe)
        V(f"v_mul_f32 v{PS+e}, s34, v{b}", pe)
        V(f"v_fma_f32 v{PT+e}, -v{b+2}, v{b}, v{b+3}", pe)
    for n_, oo in enumerate(sorted(range(16), key=lambda oo: max(done[(oo, 0)], done[(oo, 1)]))):
        te = TE + (n_ % 2) * 8; ob = OB + (n_ % 2) * 4
        for T in sorted((0, 1), key=lambda T: done[(oo, T)]):
            e0 = done[(oo, T)] + o.elag
            a = acc(oo, T); tt = te + T * 4
            for r in range(4): V(f"v_fma_f32 v{a+r}, v{a+r}, v{PS+T*4+r}, v{PT+T*4+r}", e0, dep=done[(oo, T)])
            for r in range(4): V(f"v_exp_f32 v{tt+r}, -v{a+r}", e0, 2)
            for r in range(4): V(f"v_fma_f32 v{tt+r}, v{tt+r}, s34, s34", e0)
            for r in range(4): V(f"v_rcp_f32 v{tt+r}, v{tt+r}", e0, 2)
            for r in range(4): V(f"v_mul_f32 v{a+r}, v{a+r}, v{tt+r}", e0)
            for p in range(2): V(f"v_cvt_pk_bf16_f32 v{ob+T*2+p}, v{a+2*p}, v{a+2*p+1}", e0)
        V("s_nop 1", e0, 1, "n")
        V(f"v_permlane16_swap_b32 v{ob}, v{ob+2}", e0)
        V(f"v_permlane16_swap_b32 v{ob+1}, v{ob+3}", e0)
        if not o.nostore:
            V(f"buffer_store_dwordx4 v[{ob}:{ob+3}], v{vOut}, s[{sO}:{sO+3}], {['0','s36','s37','s38'][oo//4]} offen offset:{(oo%4)*1024} {o.stflag}", e0, 3, "st")
    first = [r for r in reads if r.tag[:2] == ("w", 0)]
    fx = [r for r in reads if r.tag in (("x", 0, 0), ("x", 0, 1), ("x", 0, 2))]
    first.sort(key=lambda r: firstuse[r.tag])
    for op in fx[:1] + first[:2] + fx[1:2] + first[2:8] + fx[2:] + first[8:]:
        A(op.text); lq.append(op.tag); reads.remove(op)
    at = {}
    rdy = lambda v, i: v.earliest <= i and (v.need is None or len(L) - at[v.need] - 1 >= 8)
    A(f"s_waitcnt lgkmcnt({lgwait(mf[0][3])})")
    di = vi = over = 0; staged = False; lastdma = -10; firststore = None
    for i in range(NM):
        if i == pos[("s", 0)]: stamp(3)
        at[i] = len(L)
        D, a, b, needs, fst = mf[i]
        if not o.nomfma: A(f"v_mfma_f32_16x16x32_bf16 v[{D}:{D+3}], a[{a}:{a+3}], v[{b}:{b+3}], {'0' if fst else f'v[{D}:{D+3}]'}")
        slot = 1
        if i in bars:
            assert not [r.tag for r in reads if r.tag in bars[i][1]], (i, [r.tag for r in reads if r.tag in bars[i][1]])
            assert not [d.tag for d in dmas[di:] if d.tag in bars[i][0]], (i, "DMA not issued before its landing barrier", [d.tag for d in dmas[di:] if d.tag in bars[i][0]])
            nv, nl = vmwait(bars[i][0]), lgwait(bars[i][1])
            w = " ".join(x for x in (f"vmcnt({nv})" if nv is not None else "", f"lgkmcnt({nl})" if nl is not None else "") if x)
            if w: A("s_waitcnt " + w); slot += 1
            A("s_barrier"); slot += 1
            if o.traj: tstamp()
        if i + 1 < NM:
            assert not [r.tag for r in reads if r.tag in mf[i + 1][3]], (i, mf[i + 1][3])
            nl = lgwait(mf[i + 1][3])
            if nl is not None: A(f"s_waitcnt lgkmcnt({nl})"); slot += 1
        if not staged and di < len(dmas) and dmas[di].earliest <= i and not salu_needed(dmas[di].sal): staged = True
        if staged and slot == 1 and i - lastdma >= (o.dspace0 if dmas[di].earliest < 0 else o.dspace):
            issue(dmas[di]); di += 1; staged = False; lastdma = i
            continue
        if vi < len(valu) and valu[vi].kind == "st" and valu[vi].earliest <= i and slot == 1:
            A(valu[vi].text); vm.append(("S",)); vi += 1
            if firststore is None: firststore = (i, len(dmas) - di)
            continue
        rd = next((r for r in reads if r.earliest <= i), None)
        vready = vi < len(valu) and rdy(valu[vi], i) and valu[vi].kind != "st"
        if not staged and di < len(dmas) and dmas[di].earliest <= i:
            need = salu_needed(dmas[di].sal)
            room = 3 if not (rd or vready) else 2 if (dmas[di].earliest < 0 or not (rd and vready)) else 1
            while need and slot <= room: emit_salu(need.pop(0)); slot += 1
            if not need: staged = True
        if vready and valu[vi].kind == "n" and slot == 1:
            A(valu[vi].text); vi += 1; slot += 1
        slot = max(slot, 2)
        if rd and slot <= 3 and len(lq) < 15:
            A(rd.text); lq.append(rd.tag); reads.remove(rd); slot += 1
            if dl[rd.tag] - i < o.warn: print(f"; WARN late read {rd.tag} gap {i} deadline {dl[rd.tag]}", file=sys.stderr)
        while vi < len(valu) and rdy(valu[vi], i) and valu[vi].kind == "v" and slot + valu[vi].cost <= 4:
            A(valu[vi].text); slot += valu[vi].cost; vi += 1
        over += max(0, slot - 4)
    assert not reads and di == len(dmas)
    print(f"; leftover VALU {len(valu)-vi} (cost {sum(v.cost for v in valu[vi:])}), overflow {over}, first store at gap/DMAs left {firststore}, bars={allb}", file=sys.stderr)
    stamp(4)
    A("s_nop 7")
    for v in valu[vi:]: A(v.text)
    pad(5)
    if o.stamps:
        A("s_waitcnt vmcnt(0)")
        stamp(5)
        A("s_cmp_lg_u32 s3, 0")
        A("s_cbranch_scc1 L_end")
        for s in ("s_mov_b32 s20, s74", "s_and_b32 s21, s75, 0xffff", "s_mov_b32 s22, 0x100000", "s_waitcnt lgkmcnt(0)",
                  "s_lshl_b32 s33, s2, 7", "v_mov_b32 v6, 0"): A(s)
        if o.traj:
            for i in range(tn[0]):
                A(f"v_mov_b32 v12, s{TR[i]}")
                A(f"buffer_store_dword v12, v6, s[20:23], s33 offen offset:{4*i}")
        for i in range(0 if o.traj else 6):
            base = 40 + 4 * i if i < 3 else 80 + 4 * (i - 3)
            for jx in range(4): A(f"v_mov_b32 v{12+jx}, s{base+jx}")
            A(f"buffer_store_dwordx4 v[12:15], v6, s[20:23], s33 offen offset:{16*i}")
            A("s_nop 1")
        if o.dbgstamps:
            for s in ("s_cmp_lg_u32 s2, 100", "s_cbranch_scc1 L_end", "s_load_dwordx2 s[74:75], s[0:1], 56", "s_waitcnt lgkmcnt(0)",
                      "s_mov_b32 s20, s74", "s_and_b32 s21, s75, 0xffff", "s_mov_b32 s22, 256"): A(s)
            for i in range(5):
                for b0, off in ((40, 0), (80, 32)):
                    A(f"s_sub_u32 s33, s{b0+2+2*i}, s{b0+2*i}")
                    A("v_mov_b32 v12, s33")
                    A(f"buffer_store_dword v12, v6, s[20:23], 0 offen offset:{off+4*i}")
    L.append("L_end:")
    A("s_endpgm")
    A(".fill 2048, 4, 0xbf810000")
    check_hazards(L)
    return HEADER + f"; @launch grid=(256,1,1) block=(256,1,1) lds={LDS}\n" + \
        '.amdgcn_target "amdgcn-amd-amdhsa--gfx950"\n.text\n' + \
        f".globl {KN}\n.p2align 8\n.type {KN},@function\n" + "\n".join(L) + "\n" + \
        f""".section .rodata,"a"
.p2align 6
.amdhsa_kernel {KN}
  .amdhsa_next_free_vgpr 472
  .amdhsa_next_free_sgpr 102
  .amdhsa_accum_offset 256
  .amdhsa_group_segment_fixed_size 0
  .amdhsa_kernarg_size 72
  .amdhsa_user_sgpr_count 2
  .amdhsa_user_sgpr_kernarg_segment_ptr 1
  .amdhsa_system_sgpr_workgroup_id_x 1
  .amdhsa_float_denorm_mode_32 3
.end_amdhsa_kernel
"""

def parser():
    ap = argparse.ArgumentParser()
    ap.add_argument("out")
    for f in ("traj", "dbgstamps", "stamps", "nomfma", "nodma", "nostore", "pfhalf"): ap.add_argument("--" + f, action="store_true")
    for k, v in dict(pad="", stflag="sc1", xflag="nt", wflag="", porder="w0,x0,x1,L,S,I,w1|x2,w2", g0="x1",
                     bpos="0:11", pf="").items(): ap.add_argument("--" + k, default=v)
    for k, v in dict(idist=1, rot=1, defer=1, dspace1=4, b0=5, b1=13, b2=1, q3=7, xlead=16, ylead=40, elag=2, dspace=3, dspace0=2, warn=8, pbar=-1, xsplit=1).items():
        ap.add_argument("--" + k, type=int, default=v)
    return ap
if __name__ == "__main__":
    o = parser().parse_args()
    open(o.out, "w").write(gen(o))
```

```python
import sys, argparse, re
from hazard import check_hazards

KN = "standalone__batchnorm__sampling_kernel"
HEADER = """; Kernarg layout (72 bytes, ptrs only, base s[0:1]):
"""
WB = 65536
WB2 = WB + 8192
LDS = WB + 4 * 24576
sX, sW, sO = 8, 12, 16
sPar = (20, 24, 76, 92)
vXa, vXb, vW = 1, 2, 3
vDW, vDX1, vDX2, vOut, vPar = 7, 8, 9, 10, 11
vXa2, vXb2, vPX, vPW = 12, 13, 14, 15
TE, OB = 16, 32
vDump, vI = 38, 39
PS, PT = 40, 48
PTMP = 56
XR = 64
ACC = 128
def acc(o, T): return ACC + (o * 2 + T) * 4
def wreg(slot, k, T): return slot * 24 + (k * 2 + T) * 4
def xr(b, l): return XR + b * 32 + l * 4
SEQ = []
def wsrc(w): return SEQ[w]
def wslot_reg(w): return SEQ[w] % 2 if SEQ[w] < 8 else 0 if SEQ[w] == 15 else SEQ[w] - 6
def om(c): return SEQ.index(c)
PL = 3 * 16384
XBASE = {q: (q % 4) * 16384 for q in range(11)}
XBASE.update({11: WB2, 12: WB + 24576, 13: WB + 49152, 14: 3 * 16384, 15: 0})

class Op:
    def __init__(self, kind, text, tag=None, earliest=0, need=None, cost=1, sal=()):
        self.kind, self.text, self.tag, self.earliest, self.need, self.cost, self.sal = kind, text, tag, earliest, need, cost, list(sal)

def gen(o):
    if o.defer == 0: hs = {2 * t: t + 1 for t in range(7)}; hs.update({2 * l + 1: 8 + l for l in range(7)}); hs[14] = 15
    else:            hs = {2 * t: t + 1 for t in range(7)}; hs.update({2 * l + 3: 8 + l for l in range(6)}); hs[14] = 14; hs[15] = 15
    SEQ[:] = [0] + [hs[h] for h in sorted(hs)]
    HS = sorted(hs)
    L = []
    A = lambda s: L.append("    " + s)
    def pad(i):
        if o.pad and int(o.pad.split(":")[0]) == i:
            n = int(float(o.pad.split(":")[1]) * 100)
            if i == 5: A("s_waitcnt vmcnt(0)")
            L.append(f"L_pad{i}:")
            for s in ("s_sleep 1", "s_memrealtime s[96:97]", "s_waitcnt lgkmcnt(0)", "s_sub_u32 s96, s96, s98",
                      f"s_cmp_lt_u32 s96, {n}", f"s_cbranch_scc1 L_pad{i}"): A(s)
    TR = list(range(40, 52, 2)) + list(range(80, 92, 2)) + [96, 98, 100, 64, 66, 68, 70, 28, 30, 72, 24, 26]
    tn = [0]
    def tstamp():
        A(f"s_memtime s[{TR[tn[0]]}:{TR[tn[0]]+1}]"); tn[0] += 1
    def stamp(i):
        if o.pad and i == 0: A("s_memrealtime s[98:99]")
        if i != 5: pad(i)
        if o.traj:
            if i in (0, 2, 4, 5): tstamp()
        elif o.stamps:
            A(f"s_memtime s[{40+2*i}:{41+2*i}]")
            A(f"s_memrealtime s[{80+2*i}:{81+2*i}]")
    L.append(KN + ":")
    stamp(0)
    A("s_load_dwordx4 s[28:31], s[0:1], 0")
    A("s_load_dwordx8 s[64:71], s[0:1], 16")
    A("s_load_dwordx2 s[72:73], s[0:1], 48")
    if o.stamps: A("s_load_dwordx2 s[74:75], s[0:1], 64")
    A("s_cmp_ge_u32 s2, 256")
    A("s_cbranch_scc1 L_end")
    A("v_lshrrev_b32 v56, 6, v0")
    A("v_and_b32 v0, 63, v0")
    A("v_readfirstlane_b32 s3, v56")
    A("s_and_b32 s4, s2, 7")
    A("s_lshr_b32 s5, s2, 3")
    A("s_and_b32 s6, s5, 3")
    A("s_lshr_b32 s5, s5, 2")
    A("s_lshl_b32 s7, s4, 3")
    A("s_add_u32 s7, s7, s5")
    A("s_lshl_b32 s7, s7, 18")
    A("s_lshl_b32 s62, s6, 16")
    A("s_lshl_b32 s6, s6, 8")
    if o.rot == 0: A("s_mov_b32 s4, 0")
    if o.rot in (5, 6, 7):
        A(f"s_and_b32 s32, s5, {dict([(5, 1), (6, 3), (7, 7)])[o.rot]}")
        A("s_xor_b32 s4, s4, s32")
    if o.rot == 8:
        A("s_lshr_b32 s32, s2, 2")
        A("s_and_b32 s32, s32, 4")
        A("s_xor_b32 s4, s4, s32")
    if o.rot == 9:
        A("s_lshr_b32 s32, s2, 2")
        A("s_and_b32 s32, s32, 4")
        A("s_xor_b32 s4, s4, s32")
        A("s_and_b32 s32, s5, 1")
        A("s_xor_b32 s4, s4, s32")
    if o.rot in (2, 3, 4):
        A("s_lshr_b32 s32, s2, 3")
        A("s_and_b32 s33, s32, 1")
        if o.rot == 3: A("s_lshl_b32 s33, s33, 1")
        A("s_and_b32 s32, s32, 2")
        if o.rot != 4: A("s_lshl_b32 s32, s32, 1")
        A("s_xor_b32 s4, s4, s33")
        A("s_xor_b32 s4, s4, s32")
    A("s_lshl_b32 s59, s4, 16")
    A("s_lshl_b32 s58, s4, 7")
    A("v_lshrrev_b32 v56, 4, v0")
    A("v_and_b32 v57, 15, v0")
    A("v_and_b32 v58, 1, v56")
    A("v_lshlrev_b32 v58, 2, v58")
    A("v_or_b32 v58, s3, v58")
    A("v_lshlrev_b32 v58, 1, v58")
    A("v_xor_b32 v58, v58, v57")
    A("v_lshlrev_b32 v58, 4, v58")
    A("v_lshl_add_u32 v58, v56, 13, v58")
    A("s_lshl_b32 s33, s3, 10")
    A("s_add_u32 s34, s33, s6")
    A(f"v_add_u32 v{vDW}, s34, v58")
    A(f"s_add_u32 s60, s33, {WB}")
    A("s_and_b32 s35, s3, 1")
    A("s_lshr_b32 s36, s3, 1")
    A("v_lshrrev_b32 v59, 3, v0")
    A("v_and_b32 v60, 7, v0")
    A("v_lshrrev_b32 v61, 1, v59")
    A("s_lshl_b32 s37, s35, 2")
    A("v_add_u32 v61, s37, v61")
    A("v_xor_b32 v61, v61, v60")
    A("v_lshlrev_b32 v61, 4, v61")
    A("v_lshl_add_u32 v61, v59, 14, v61")
    A("s_lshl_b32 s37, s35, 17")
    A("s_add_u32 s37, s37, s7")
    A("s_lshl_b32 s38, s36, 12")
    A("s_add_u32 s39, s37, s38")
    A(f"v_add_u32 v{vDX1}, s39, v61")
    A("s_lshl_b32 s61, s35, 13")
    A("s_add_u32 s61, s61, s38")
    A(f"s_mov_b32 s{sX+2}, 0x1000000")
    A(f"s_mov_b32 s{sX+3}, 0x20000")
    A(f"s_mov_b32 s{sW+2}, 0x180000")
    A(f"s_mov_b32 s{sW+3}, 0x20000")
    A("s_lshl_b32 s39, s3, 14")
    A("s_add_u32 s62, s62, s39")
    A("s_add_u32 s62, s62, s7")
    A("v_lshl_add_u32 v59, v57, 10, s62")
    A(f"v_lshl_add_u32 v{vPX}, v56, 28, v59")
    A("s_lshr_b32 s39, s4, 2")
    A("v_xor_b32 v59, s39, v56")
    A("v_and_b32 v59, 1, v59")
    A("v_lshlrev_b32 v59, 18, v59")
    A("v_lshrrev_b32 v60, 2, v57")
    A("v_lshl_add_u32 v59, v60, 19, v59")
    A("v_lshrrev_b32 v60, 1, v56")
    A("v_lshl_add_u32 v59, v60, 21, v59")
    A("v_and_b32 v60, 1, v0")
    A("v_lshl_add_u32 v59, v60, 7, v59")
    A("v_and_b32 v60, 2, v0")
    A("v_lshl_add_u32 v59, v60, 9, v59")
    A("s_lshl_b32 s5, s5, 13")
    A("s_add_u32 s5, s5, s6")
    A("s_lshl_b32 s39, s3, 11")
    A("s_add_u32 s5, s5, s39")
    A(f"v_add_u32 v{vPW}, s5, v59")
    A("v_and_b32 v60, 16, v0")
    A(f"v_lshl_add_u32 v36, v60, 17, v{vPW}")
    A("s_and_b32 s63, s59, 0x30000")
    A("s_getpc_b64 s[56:57]")
    if o.idist:
        A("s_lshr_b32 s39, s2, 3")
        A("s_lshl_b32 s39, s39, 2")
        A("s_add_u32 s39, s39, s3")
        A("s_lshl_b32 s39, s39, 8")
        A(f"v_and_b32 v{vI}, 1, v0")
        A(f"v_lshl_add_u32 v{vI}, v{vI}, 7, s39")
    else:
        A("s_lshl_b32 s39, s3, 13")
        A(f"v_lshl_add_u32 v{vI}, v0, 7, s39")
    A("s_waitcnt lgkmcnt(0)")
    stamp(1)
    A(f"s_mov_b32 s{sX}, s28")
    A(f"s_and_b32 s{sX+1}, s29, 0xffff")
    A(f"s_mov_b32 s{sW}, s30")
    A(f"s_and_b32 s{sW+1}, s31, 0xffff")

    vm, lq = [], []
    tmpi = [0]
    def stmp():
        tmpi[0] += 1
        return 52 + tmpi[0] % 4
    def items(tok):
        r = []
        if tok[0] == "w":
            w = int(tok[1:])
            for grp in range(6):
                st = stmp()
                r.append(Op("d", f"buffer_load_dwordx4 v{vDW}, s[{sW}:{sW+3}], s{st} offen {o.wflag} lds", ("W", w),
                            sal=[f"s_add_u32 m0, s60, {(w % 4) * 24576 + grp * 4096}",
                                 f"s_xor_b32 s{st}, s59, {wsrc(w) * 32768 + (grp // 2) * 524288 + (grp % 2) * 4096}"]))
        elif tok[0] == "x":
            q = int(tok[1:]); st = stmp()
            for i in range(4):
                if q < 8:
                    r.append(Op("d", f"buffer_load_dwordx4 v{vDX1}, s[{sX}:{sX+3}], s{st} offen offset:{i*1024} {o.xflag} lds", ("X", q),
                                sal=[f"s_add_u32 m0, s61, {XBASE[q]}", f"s_xor_b32 s{st}, s58, {(q >> 1) * 128 + (q & 1) * 8192}"]))
                else:
                    st = stmp()
                    r.append(Op("d", f"buffer_load_dwordx4 v{vDX2}, s[{sX}:{sX+3}], s{st} offen {o.xflag} lds", ("X", q),
                                sal=[f"s_add_u32 m0, s61, {XBASE[q] + i * 1024}", f"s_xor_b32 s{st}, s58, {(q - 8) * 2048 + 512 + i * 128}"]))
        elif tok[0] == "a":
            u = int(tok[1:]); st = stmp()
            r.append(Op("d", f"buffer_load_dword v{vDump}, v{vPX}, s[{sX}:{sX+3}], s{st} offen {o.xflag}", ("F",), sal=[f"s_xor_b32 s{st}, s58, {u*128}"]))
            if o.pfhalf: r.append(Op("d", f"buffer_load_dword v{vDump}, v{vPX}, s[{sX}:{sX+3}], s{st} offen offset:64 {o.xflag}", ("F",), sal=[f"s_xor_b32 s{st}, s58, {u*128}"]))
        elif tok[0] == "b":
            j = int(tok[1:]); st = stmp()
            r.append(Op("d", f"buffer_load_dword v{vDump}, v{vPW}, s[{sW}:{sW+3}], s{st} offen {o.wflag}", ("F",), sal=[f"s_xor_b32 s{st}, s63, {j*65536}"]))
            if o.pfhalf: r.append(Op("d", f"buffer_load_dword v{vDump}, v{vPW}, s[{sW}:{sW+3}], s{st} offen offset:64 {o.wflag}", ("F",), sal=[f"s_xor_b32 s{st}, s63, {j*65536}"]))
        elif tok[0] == "c":
            j = int(tok[1:]); st = stmp()
            r.append(Op("d", f"buffer_load_dword v{vDump}, v36, s[{sW}:{sW+3}], s{st} offen {o.wflag}", ("F",), sal=[f"s_xor_b32 s{st}, s63, {j*65536}"]))
        elif tok == "I":
            r.append(Op("d", f"global_load_dword v{vDump}, v{vI}, s[56:57]", ("F",)))
        elif tok == "L":
            r.append(Op("d", f"buffer_load_dword v{vPar}, s[20:23], s6 offen lds", ("P",), sal=[f"s_add_u32 m0, s39, {PL}"]))
        elif tok == "P":
            for i in range(4):
                for h in range(2):
                    r.append(Op("d", f"buffer_load_dwordx2 v[{16+4*i+2*h}:{17+4*i+2*h}], v{vPar}, s[{sPar[i]}:{sPar[i]+3}], 0 offen offset:{32*h}", ("P",)))
        return r
    have = {}
    def salu_needed(sal): return [s for s in sal if have.get(s.split()[1]) != s]
    def emit_salu(s): A(s); have[s.split()[1]] = s
    def issue(op):
        if o.nodma and "lds" in op.text: return
        A(op.text); vm.append(op.tag)
    pre, _, post = o.porder.partition("|")
    useL = "L" in pre.split(",")
    def lsetup():
        A("s_cmp_eq_u32 s3, 1")
        A("s_cselect_b64 s[64:65], s[66:67], s[64:65]")
        A("s_cmp_eq_u32 s3, 2")
        A("s_cselect_b64 s[64:65], s[68:69], s[64:65]")
        A("s_cmp_eq_u32 s3, 3")
        A("s_cselect_b64 s[64:65], s[70:71], s[64:65]")
        A("s_mov_b32 s20, s64")
        A("s_and_b32 s21, s65, 0xffff")
        A("s_mov_b32 s22, 1024")
        A("s_mov_b32 s23, 0x20000")
        A(f"v_lshlrev_b32 v{vPar}, 2, v0")
        A("s_lshl_b32 s39, s3, 8")
    def parsetup():
        A("s_lshl_b32 s33, s3, 6")
        A("s_add_u32 s33, s33, s6")
        A(f"v_lshl_add_u32 v{vPar}, v56, 3, s33")
        for i in range(4):
            A(f"s_mov_b32 s{sPar[i]}, s{64+2*i}")
            A(f"s_and_b32 s{sPar[i]+1}, s{65+2*i}, 0xffff")
            A(f"s_mov_b32 s{sPar[i]+2}, 1024")
            A(f"s_mov_b32 s{sPar[i]+3}, 0x20000")
    def run(toks):
        for tok in toks:
            if tok == "P": parsetup()
            if tok == "L": lsetup()
            for op in items(tok):
                for s in salu_needed(op.sal): emit_salu(s)
                if L[-1].split()[1].startswith("m0"): A("s_nop 0")
                issue(op)
    ptoks = [x for x in pre.split(",") if x]
    cut = ptoks.index("S") if "S" in ptoks else len(ptoks)
    run(ptoks[:cut])
    A("s_lshl_b32 s38, s36, 10")
    A("s_add_u32 s39, s37, s38")
    A(f"v_add_u32 v{vDX2}, s39, v61")
    if useL:
        A("s_lshl_b32 s33, s3, 6")
        A(f"v_lshl_add_u32 v37, v56, {4 if o.nosw else 3}, s33")
        A("s_add_u32 s33, s33, s6")
    elif "P" not in pre.split(","): parsetup()
    A("v_lshrrev_b32 v58, 1, v57")
    A("v_xor_b32 v58, v58, v56")
    A("v_lshlrev_b32 v58, 4, v58")
    A("v_and_b32 v59, 7, v57")
    A("v_lshl_add_u32 v58, v59, 7, v58")
    A("v_lshrrev_b32 v59, 3, v57")
    A(f"v_lshl_add_u32 v{vXa}, v59, 13, v58")
    A(f"v_xor_b32 v{vXb}, 64, v{vXa}")
    A(f"v_add_u32 v{vXa2}, {WB2}, v{vXa}")
    A(f"v_add_u32 v{vXb2}, {WB2}, v{vXb}")
    A("v_lshrrev_b32 v58, 2, v57")
    A("v_and_b32 v59, 3, v0")
    A("v_and_b32 v62, 1, v56")
    A("v_lshl_add_u32 v62, v62, 2, v58")
    A("v_lshlrev_b32 v62, 1, v62")
    A("s_lshl_b32 s34, s3, 2")
    if o.nosw:
        A("v_add_u32 v63, s34, v59")
    else:
        A("v_lshrrev_b32 v63, 1, v59")
        A("v_add_u32 v63, s34, v63")
    A("v_xor_b32 v63, v63, v62")
    A("v_lshlrev_b32 v63, 4, v63")
    A("v_lshl_add_u32 v63, v58, 10, v63")
    A("v_lshl_add_u32 v63, v56, 8, v63")
    if not o.nosw:
        A("v_and_b32 v59, 1, v59")
        A("v_lshl_add_u32 v63, v59, 3, v63")
    A(f"v_add_u32 v{vW}, {WB}, v63")
    A(f"v_xor_b32 v{vW+1}, {8 if o.nosw else 32}, v{vW}")
    A(f"v_add_u32 v{vW+2}, 49152, v{vW}")
    A(f"v_add_u32 v{vW+3}, 49152, v{vW+1}")
    if o.nosw:
        A("v_lshlrev_b32 v58, 4, v56")
    else:
        A("v_and_b32 v58, 1, v56")
        A("v_lshrrev_b32 v59, 1, v56")
        A("v_lshl_add_u32 v58, v58, 1, v59")
        A("v_lshlrev_b32 v58, 4, v58")
    A("v_lshl_add_u32 v58, v57, 14, v58")
    A("s_add_u32 s33, s33, s7")
    A(f"v_add_u32 v{vOut}, s33, v58")
    A(f"s_mov_b32 s{sO}, s72")
    A(f"s_and_b32 s{sO+1}, s73, 0xffff")
    A(f"s_mov_b32 s{sO+2}, 0x1000000")
    A(f"s_mov_b32 s{sO+3}, 0x20000")
    A("s_mov_b32 s34, 0x3fb8aa3b")
    A("s_mov_b32 s36, 4096")
    A("s_mov_b32 s37, 8192")
    A("s_mov_b32 s38, 12288")
    run(ptoks[cut + 1:])
    def qwait(q, tags, mx):
        idx = max([i for i, t in enumerate(q) if t in tags], default=-1)
        if idx < 0: return None
        n = len(q) - 1 - idx
        del q[:idx + 1]
        assert n <= mx, n
        return n
    vmwait = lambda tags: qwait(vm, tags, 63)
    lgwait = lambda tags: qwait(lq, tags, 15)
    NST = 6
    if o.itouch:
        A("s_mov_b64 vcc, 1")
        A("s_mov_b32 s32, s3")
        L.append("L_walk:")
        for k in range(NST):
            A(f"s_cmp_eq_u32 s32, {k}")
            A(f"s_cbranch_scc1 L_stub{k}")
        A("s_branch L_walked")
        L.append("L_back:")
        A("s_add_u32 s32, s32, 4")
        A("s_branch L_walk")
        L.append("L_walked:")
        A("s_mov_b64 vcc, 0")
    x1early = "x1" in o.g0.split(",")
    n = vmwait([("X", 0), ("W", 0)] + ([("X", 1)] if x1early else []) + ([("P",)] if useL and o.pbar < 0 else []))
    if n is not None: A(f"s_waitcnt vmcnt({n})")
    A("s_barrier")
    stamp(2)

    mf, pos, touched = [], {}, set()
    def add(oo, T, wslot, k, breg, needs):
        mf.append((acc(oo, T), wreg(wslot, k, T), breg, needs, (oo, T) not in touched))
        touched.add((oo, T))
    def p1x(r): return xr(1, r & 7)
    for t in range(8):
        wom = om(t)
        for oo in range(16):
            for ti, T in enumerate((0, 1) if oo % 2 == 0 else (1, 0)):
                for k in ((0, 1, 2) if ti == 0 else (2, 1, 0)):
                    r = oo + k - 1
                    if 0 <= r <= 15: add(oo, T, t % 2, k, p1x(r), [("x", t, r), ("w", wom, k, T)])
            pos[("o", 16 * t + oo)] = len(mf) - 1
    fom = [om(8 + l) for l in range(8)]
    groups = []
    for s in range(14): groups += [(s, k) for k in (2, 1, 0) if 0 <= s + 1 - k <= 15]
    groups += [(14, 2), (14, 1), (15, 2), (14, 0), (15, 1)]
    fl = lastT = 0
    done = {}
    for (s, k) in groups:
        pos.setdefault(("s", s), len(mf))
        for T in (lastT, 1 - lastT):
            for l in (range(8) if fl == 0 else range(7, -1, -1)):
                add(s + 1 - k, T, wslot_reg(fom[l]), k, xr(s & 1, l), [("y", s, l), ("w", fom[l], k, T)])
            fl ^= 1
            done[(s + 1 - k, T)] = len(mf) - 1
        lastT = 1 - lastT
    NM = len(mf)
    firstuse, lastuse = {}, {}
    for i, m in enumerate(mf):
        for tg in m[3]: firstuse.setdefault(tg, i); lastuse[tg] = i
    bp = dict((int(a), int(b)) for a, b in (x.split(":") for x in o.bpos.split(",") if x))
    H = {h: pos[("o", bp.get(h, 16 * (h // 2) + (o.b1 if h % 2 else o.b0)))] for h in HS}
    Q = [pos[("s", int(s))] + o.b2 for s in o.qs.split(",")]
    allb = [H[h] for h in HS] + Q
    assert allb == sorted(allb)
    wtags = lambda w: [("w", w, k, T) for k in range(3) for T in range(2)]
    def xtags(q):
        if q < 8: return [("x", t, r) for t in (q & ~1, q | 1) for r in range(8 * (q & 1), 8 * (q & 1) + 8)]
        return [("y", s, l) for s in (2 * (q - 8), 2 * (q - 8) + 1) for l in range(8)]
    land, issue_at, prev = {}, {}, {}
    early = set(x.partition("@")[0] for x in (pre + "," + post).split(","))
    for w in range(16):
        land[("W", w)] = -1 if w == 0 else allb[w - 1]
        if w >= 4: issue_at[f"w{w}"] = allb[w - 4]; prev[f"w{w}"] = wtags(w - 4)
        elif f"w{w}" not in early: issue_at[f"w{w}"] = allb[0]; prev[f"w{w}"] = []
    for q in range(16):
        land[("X", q)] = -1 if q == 0 or (q == 1 and x1early) else H[2 * q - 2] if q <= 8 else Q[0] if q == 9 else Q[1] if q <= 13 else Q[2]
    for q in range(3, 11): issue_at[f"x{q}"] = H[2 * (q - 3)]; prev[f"x{q}"] = xtags(q - 4) if q >= 4 else []
    xi = dict((int(a), int(b)) for a, b in (x.split(":") for x in o.xi.split(",") if x))
    for q, w in ((11, 12), (12, 13), (13, 14)): issue_at[f"x{q}"] = allb[max(w, xi.get(q, 0))]; prev[f"x{q}"] = wtags(w)
    xl = dict((int(a), int(b)) for a, b in (x.split(":") for x in o.xl.split(",") if x))
    for q, b in xl.items(): land[("X", q)] = Q[b]
    for q, p in ((14, 7), (15, 8)): issue_at[f"x{q}"] = allb[max(15, xi.get(q, 0))]; prev[f"x{q}"] = xtags(p)
    bars = {g: ([t for t, b in land.items() if b == g], sum([prev[k] for k, b in issue_at.items() if b == g], [])) for g in allb}
    if o.pbar >= 0: bars[H[o.pbar]][0].append(("P",))
    pe = H[o.pbar] if o.pbar >= 0 else -1
    ptags = [("p", i) for i in range(8)]
    if useL:
        rel = issue_at["x3"] = allb[allb.index(pe) + 1] if pe >= 0 else allb[0]
        bars[rel][1].extend(ptags)
    dmas = []
    for tok in filter(None, post.split(",")):
        tok, _, e = tok.partition("@")
        for j, op in enumerate(items(tok)): op.earliest = -1 if not e else int(e) + j * o.dspace1; dmas.append(op)
    pf = dict(x.split("@") for x in o.pf.split(",") if x)
    for g in allb:
        for k in sorted([k for k, b in issue_at.items() if b == g], key=lambda k: land[(k[0].upper(), int(k[1:]))]):
            its = items(k)
            for i, op in enumerate(its):
                op.earliest = g
                if k[0] == "x" and int(k[1:]) <= 9 and i >= 2 and o.xsplit: op.earliest = allb[allb.index(g) + 1] + 0.5
                dmas.append(op)
        for tok, h in pf.items():
            if H[int(h)] == g:
                for op in items(tok): op.earliest = g + 0.7; dmas.append(op)
    dmas.sort(key=lambda d: d.earliest)
    reads = []
    def rd_x(tag, dst, q, off, kk, e):
        b = XBASE[q]
        v = (vXa, vXb)[kk] if b < WB else (vXa2, vXb2)[kk]
        reads.append(Op("r", f"ds_read_b128 v[{dst}:{dst+3}], v{v} offset:{(b if b < WB else b - WB2) + off}", tag, max(e, land[("X", q)])))
    for w in range(16):
        for k in (1, 2, 0):
            for T in (0, 1):
                for h in (0, 1):
                    r = wreg(wslot_reg(w), k, T) + 2 * h
                    reads.append(Op("t", f"ds_read_b64_tr_b16 a[{r}:{r+1}], v{vW + T + (2 if w % 4 >= 2 else 0)} offset:{(w%2)*24576 + k*8192 + h*4096}",
                                    ("w", w, k, T), land[("W", w)]))
    for t in range(8):
        for r in range(16):
            e = max(lastuse.get(("x", t, r - 8) if r >= 8 else ("x", t - 1, r + 8), -1), firstuse[("x", t, r)] - o.xlead)
            rd_x(("x", t, r), p1x(r), (t & ~1) + (r >> 3), (r & 7) * 1024, t & 1, e)
    for s in range(16):
        for l in range(8):
            e = firstuse[("y", 0, l)] - o.ylead if s == 0 else max(lastuse[("x", 7, 8 + l)], pos[("s", 0)]) if s == 1 else lastuse[("y", s - 2, l)]
            rd_x(("y", s, l), xr(s & 1, l), 8 + (s >> 1), (s & 1) * 4096 + (l >> 1) * 1024, l & 1, e)
    if useL:
        for i in range(8):
            if not o.nosw: reads.append(Op("r", f"ds_read_b64 v[{16+2*i}:{17+2*i}], v37 offset:{PL + (i >> 1) * 256 + (i & 1) * 32}", ("p", i), pe))
            elif i < 4: reads.append(Op("r", f"ds_read_b128 v[{16+4*i}:{19+4*i}], v37 offset:{PL + i * 256}", ("p", i), pe))
            firstuse[("p", i)] = NM
    dl = dict(firstuse)
    for g, (_, tl) in bars.items():
        for tg in tl: dl[tg] = min(dl[tg], g + 1)
    reads.sort(key=lambda r: (dl[r.tag], r.earliest))
    valu = []
    def V(txt, e, cost=1, kind="v", dep=None): valu.append(Op(kind, txt, None, e, dep, cost))
    if useL: pe = rel
    for e in range(8):
        d = e >> 1; b = PTMP + (e % 2) * 4
        for j, src in enumerate((20, 24, 16, 28)):
            V(f"v_and_b32 v{b+j}, 0xffff0000, v{src+d}" if e & 1 else f"v_lshlrev_b32 v{b+j}, 16, v{src+d}", pe)
        V(f"v_add_f32 v{b}, 0x3727c5ac, v{b}", pe)
        V(f"v_sqrt_f32 v{b}, v{b}", pe, 2)
        V(f"v_rcp_f32 v{b}, v{b}", pe, 2)
        V(f"v_mul_f32 v{b+2}, s34, v{b+2}", pe)
        V(f"v_mul_f32 v{b}, v{b+1}, v{b}", pe)
        V(f"v_mul_f32 v{b+3}, s34, v{b+3}", pe)
        V(f"v_mul_f32 v{PS+e}, s34, v{b}", pe)
        V(f"v_fma_f32 v{PT+e}, -v{b+2}, v{b}, v{b+3}", pe)
    for n_, oo in enumerate(sorted(range(16), key=lambda oo: max(done[(oo, 0)], done[(oo, 1)]))):
        te = TE + (n_ % 2) * 8; ob = OB + (n_ % 2) * 4
        for T in sorted((0, 1), key=lambda T: done[(oo, T)]):
            e0 = done[(oo, T)] + o.elag
            a = acc(oo, T); tt = te + T * 4
            for r in range(4): V(f"v_fma_f32 v{a+r}, v{a+r}, v{PS+T*4+r}, v{PT+T*4+r}", e0, dep=done[(oo, T)])
            for r in range(4): V(f"v_exp_f32 v{tt+r}, -v{a+r}", e0, 2)
            for r in range(4): V(f"v_fma_f32 v{tt+r}, v{tt+r}, s34, s34", e0)
            for r in range(4): V(f"v_rcp_f32 v{tt+r}, v{tt+r}", e0, 2)
            for r in range(4): V(f"v_mul_f32 v{a+r}, v{a+r}, v{tt+r}", e0)
            for p in range(2): V(f"v_cvt_pk_bf16_f32 v{ob+T*2+p}, v{a+2*p}, v{a+2*p+1}", e0)
        if not o.nosw:
            V("s_nop 1", e0, 1, "n")
            V(f"v_permlane16_swap_b32 v{ob}, v{ob+2}", e0, o.pcost)
            V(f"v_permlane16_swap_b32 v{ob+1}, v{ob+3}", e0, o.pcost)
        if not o.nostore:
            V(f"buffer_store_dwordx4 v[{ob}:{ob+3}], v{vOut}, s[{sO}:{sO+3}], {['0','s36','s37','s38'][oo//4]} offen offset:{(oo%4)*1024} {o.stflag if n_ < 16 - o.nlast else o.stlast}", e0, 3, "st")
    first = [r for r in reads if r.tag[:2] == ("w", 0)]
    fx = [r for r in reads if r.tag in (("x", 0, 0), ("x", 0, 1), ("x", 0, 2))]
    first.sort(key=lambda r: firstuse[r.tag])
    for op in fx[:1] + first[:2] + fx[1:2] + first[2:8] + fx[2:] + first[8:]:
        A(op.text); lq.append(op.tag); reads.remove(op)
    at = {}
    rdy = lambda v, i: v.earliest <= i and (v.need is None or len(L) - at[v.need] - 1 >= 8)
    A(f"s_waitcnt lgkmcnt({lgwait(mf[0][3])})")
    di = vi = over = 0; staged = False; lastdma = -10; firststore = None
    for i in range(NM):
        if i == pos[("s", 0)]: stamp(3)
        at[i] = len(L)
        D, a, b, needs, fst = mf[i]
        if not o.nomfma: A(f"v_mfma_f32_16x16x32_bf16 v[{D}:{D+3}], a[{a}:{a+3}], v[{b}:{b+3}], {'0' if fst else f'v[{D}:{D+3}]'}")
        slot = 1
        if i in bars:
            assert not [r.tag for r in reads if r.tag in bars[i][1]], (i, [r.tag for r in reads if r.tag in bars[i][1]])
            assert not [d.tag for d in dmas[di:] if d.tag in bars[i][0]], (i, "DMA not issued before its landing barrier", [d.tag for d in dmas[di:] if d.tag in bars[i][0]])
            nv, nl = vmwait(bars[i][0]), lgwait(bars[i][1])
            w = " ".join(x for x in (f"vmcnt({nv})" if nv is not None else "", f"lgkmcnt({nl})" if nl is not None else "") if x)
            if w: A("s_waitcnt " + w); slot += 1
            A("s_barrier"); slot += 1
            if o.traj: tstamp()
        if i + 1 < NM:
            assert not [r.tag for r in reads if r.tag in mf[i + 1][3]], (i, mf[i + 1][3])
            nl = lgwait(mf[i + 1][3])
            if nl is not None: A(f"s_waitcnt lgkmcnt({nl})"); slot += 1
        if not staged and di < len(dmas) and dmas[di].earliest <= i and not salu_needed(dmas[di].sal): staged = True
        sp = (o.dspace0 if dmas[di].earliest < 0 else o.dspace if i < o.dlate else o.dspace2) / 10 if di < len(dmas) else 0
        if staged and slot == 1 and i >= lastdma + sp:
            lastdma = lastdma + sp if i < lastdma + sp + 1.5 else i
            issue(dmas[di]); di += 1; staged = False
            continue
        if vi < len(valu) and valu[vi].kind == "st" and valu[vi].earliest <= i and slot == 1 and (di == len(dmas) or not o.holdst):
            A(valu[vi].text); vm.append(("S",)); vi += 1
            if firststore is None: firststore = (i, len(dmas) - di)
            continue
        rd = next((r for r in reads if r.earliest <= i), None)
        vready = vi < len(valu) and rdy(valu[vi], i) and valu[vi].kind != "st"
        if not staged and di < len(dmas) and dmas[di].earliest <= i:
            need = salu_needed(dmas[di].sal)
            room = 3 if not (rd or vready) else 2 if (dmas[di].earliest < 0 or not (rd and vready)) else 1
            while need and slot <= room: emit_salu(need.pop(0)); slot += 1
            if not need: staged = True
        if vready and valu[vi].kind == "n" and slot == 1:
            A(valu[vi].text); vi += 1; slot += 1
        slot = max(slot, 2)
        if rd and slot <= 3 and len(lq) < 15:
            A(rd.text); lq.append(rd.tag); reads.remove(rd); slot += 1
            if dl[rd.tag] - i < o.warn: print(f"; WARN late read {rd.tag} gap {i} deadline {dl[rd.tag]}", file=sys.stderr)
        while vi < len(valu) and rdy(valu[vi], i) and valu[vi].kind == "v" and slot + valu[vi].cost <= 4:
            A(valu[vi].text); slot += valu[vi].cost; vi += 1
        over += max(0, slot - 4)
    assert not reads and di == len(dmas)
    print(f"; leftover VALU {len(valu)-vi} (cost {sum(v.cost for v in valu[vi:])}), overflow {over}, first store at gap/DMAs left {firststore}, bars={allb}", file=sys.stderr)
    stamp(4)
    A("s_nop 7")
    for v in valu[vi:]: A(v.text)
    pad(5)
    if o.stamps:
        A("s_waitcnt vmcnt(0)")
        stamp(5)
        A("s_cmp_lg_u32 s3, 0")
        A("s_cbranch_scc1 L_end")
        for s in ("s_mov_b32 s20, s74", "s_and_b32 s21, s75, 0xffff", "s_mov_b32 s22, 0x100000", "s_waitcnt lgkmcnt(0)",
                  "s_lshl_b32 s33, s2, 7", "v_mov_b32 v6, 0"): A(s)
        if o.traj:
            for i in range(tn[0]):
                A(f"v_mov_b32 v12, s{TR[i]}")
                A(f"buffer_store_dword v12, v6, s[20:23], s33 offen offset:{4*i}")
        for i in range(0 if o.traj else 6):
            base = 40 + 4 * i if i < 3 else 80 + 4 * (i - 3)
            for jx in range(4): A(f"v_mov_b32 v{12+jx}, s{base+jx}")
            A(f"buffer_store_dwordx4 v[12:15], v6, s[20:23], s33 offen offset:{16*i}")
            A("s_nop 1")
        if o.dbgstamps:
            for s in ("s_cmp_lg_u32 s2, 100", "s_cbranch_scc1 L_end", "s_load_dwordx2 s[74:75], s[0:1], 56", "s_waitcnt lgkmcnt(0)",
                      "s_mov_b32 s20, s74", "s_and_b32 s21, s75, 0xffff", "s_mov_b32 s22, 256"): A(s)
            for i in range(5):
                for b0, off in ((40, 0), (80, 32)):
                    A(f"s_sub_u32 s33, s{b0+2+2*i}, s{b0+2*i}")
                    A("v_mov_b32 v12, s33")
                    A(f"buffer_store_dword v12, v6, s[20:23], 0 offen offset:{off+4*i}")
    L.append("L_end:")
    A("s_endpgm")
    A(".fill 2048, 4, 0xbf810000")
    check_hazards(L)
    if o.itouch: L = insert_stubs(L, NST, o.ioff, o.iphase)
    return HEADER + f"; @launch grid=(256,1,1) block=(256,1,1) lds={LDS}\n" + \
        '.amdgcn_target "amdgcn-amd-amdhsa--gfx950"\n.text\n' + \
        f".globl {KN}\n.p2align {o.align}\n.type {KN},@function\n" + "\n".join(L) + "\n" + \
        f""".section .rodata,"a"
.p2align 6
.amdhsa_kernel {KN}
  .amdhsa_next_free_vgpr 472
  .amdhsa_next_free_sgpr 102
  .amdhsa_accum_offset 256
  .amdhsa_group_segment_fixed_size 0
  .amdhsa_kernarg_size 72
  .amdhsa_user_sgpr_count 2
  .amdhsa_user_sgpr_kernarg_segment_ptr 1
  .amdhsa_system_sgpr_workgroup_id_x 1
  .amdhsa_float_denorm_mode_32 3
.end_amdhsa_kernel
"""

def insert_stubs(L, n, base, phase):
    import subprocess, tempfile, os
    body = [x for x in L]
    txt = '.amdgcn_target "amdgcn-amd-amdhsa--gfx950"\n.text\n' + "\n".join(body) + "\n" + "".join(f"L_stub{k}:\n" for k in range(n))
    d = tempfile.mkdtemp()
    open(d + "/a.s", "w").write(txt)
    subprocess.check_call(["clang", "-x", "assembler", "-target", "amdgcn-amd-amdhsa", "-mcpu=gfx950", "-c", d + "/a.s", "-o", d + "/a.o"])
    dis = subprocess.check_output(["llvm-objdump", "-d", "--mcpu=gfx950", d + "/a.o"], text=True)
    addrs = [int(m.group(1), 16) for m in re.finditer(r"// ([0-9A-F]{12}):", dis)]
    idx = [i for i, x in enumerate(body) if x.startswith("    ") and not x.strip().startswith(".")]
    out, k = [], 0
    amap = dict(zip(idx, addrs))
    for i, x in enumerate(body):
        if k < n and i in amap and base + amap[i] + 4 * k >= ((base + 0x600) // 0x1000 + 1 + k) * 0x1000 + phase:
            out.append(f"L_stub{k}:"); out.append("    s_cbranch_vccnz L_back"); k += 1
        out.append(x)
    assert k == n, k
    return out

def parser():
    ap = argparse.ArgumentParser()
    ap.add_argument("out")
    for f in ("traj", "dbgstamps", "stamps", "nomfma", "nodma", "nostore", "pfhalf"): ap.add_argument("--" + f, action="store_true")
    for k, v in dict(stlast="", pad="", stflag="sc1", xflag="nt", wflag="", porder="w0,I,x0,x1,L,S,w1|x2,w2", g0="x1",
                     bpos="0:10", pf="", xi="11:13,12:14,13:15", xl="12:2,13:2", qs="1,3,7").items(): ap.add_argument("--" + k, default=v)
    for k, v in dict(nlast=0, nosw=1, pcost=2, holdst=1, align=12, itouch=1, ioff=0x2300, iphase=0, idist=1, rot=1, defer=1, dspace1=4, b0=5, b1=13, b2=1, q3=7, xlead=16, ylead=40, elag=2, dspace=55, dspace0=40, dspace2=50, dlate=765, warn=8, pbar=-1, xsplit=0).items():
        ap.add_argument("--" + k, type=int, default=v)
    return ap
if __name__ == "__main__":
    o = parser().parse_args()
    open(o.out, "w").write(gen(o))
```

```python
import sys, argparse, re
from hazard import check_hazards

KN = "standalone__batchnorm__sampling_kernel"
HEADER = """; conv1d(K=3) as MFMA GEMM + folded BatchNorm + SiLU.  Generated by tools/gen4.py (hand-written generator).
"""
WB = 65536
WB2 = WB + 8192
LDS = WB + 4 * 24576
PL = 3 * 16384
sX, sW, sO, sP = 8, 12, 16, 20
vXa, vXb, vW = 1, 2, 3
vDW, vDX, vOut, vPar = 7, 8, 10, 11
vXa2, vXb2, vXa3, vXb3 = 12, 13, 14, 15
TE, OB = 16, 32
vPl, vDump, vI = 37, 38, 39
PS, PT, PTMP = 40, 48, 56
XR, ACC = 64, 128
def acc(o, T): return ACC + (o * 2 + T) * 4
def wreg(slot, k, T): return slot * 24 + (k * 2 + T) * 4
def xr(b, l): return XR + b * 32 + l * 4
def r4(x): return f"v[{x}:{x+3}]" if x < 256 else f"a[{x-256}:{x-253}]"
def kv(s): return dict((int(a), int(b)) for a, b in (x.split(":") for x in s.split(",") if x))

class Op:
    def __init__(self, kind, text, tag=None, earliest=0, need=None, cost=1, sal=(), dep=(), grp=0, pk=None):
        self.kind, self.text, self.tag, self.earliest, self.need, self.cost = kind, text, tag, earliest, need, cost
        self.sal, self.dep, self.grp, self.pk, self.at = list(sal), list(dep), grp, pk, None

def gen(o):
    N1 = o.n1; NL = 16 - N1; NU = N1 + 8
    fh = [int(x) for x in o.fh.split(",")]
    fown = fh[-1] < 2 * N1 - 2
    assert len(fh) == NL
    hs = {2 * t: t + 1 for t in range(N1 - 1)}
    for l, h in enumerate(fh): assert h not in hs; hs[h] = N1 + l
    SEQ = [0] + [hs[h] for h in sorted(hs)]
    HS = sorted(set(hs) | {2 * N1 - 2})
    om = SEQ.index
    def wslot(w): c = SEQ[w]; return c % 2 if c < N1 else 0 if c == 15 and not fown else c - N1 + 2
    place = o.place.split(",")
    JS = 8192 if NL == 8 else NL * 1024
    WPOS = [WB2, WB + 24576, WB + 49152] if NL == 8 else [WB + 2 * JS * j for j in range(8)]
    XBASE = {q: (q % 4) * 16384 for q in range(N1)}
    XPREV, nr = {}, N1
    for p, w in enumerate(place):
        if w == "r": XBASE[N1 + p] = (nr % 4) * 16384; XPREV[N1 + p] = max(q for q in range(N1 + p) if XBASE.get(q) == XBASE[N1 + p]); nr += 1
        else: XBASE[N1 + p] = WPOS[int(w)]
    B2 = WPOS[0]; B3 = B2 + 61440
    L = []
    A = lambda s: L.append("    " + s)
    def pad(i):
        if o.pad and int(o.pad.split(":")[0]) == i:
            n = int(float(o.pad.split(":")[1]) * 100)
            if i == 5: A("s_waitcnt vmcnt(0)")
            L.append(f"L_pad{i}:")
            for s in ("s_sleep 1", "s_memrealtime s[96:97]", "s_waitcnt lgkmcnt(0)", "s_sub_u32 s96, s96, s98",
                      f"s_cmp_lt_u32 s96, {n}", f"s_cbranch_scc1 L_pad{i}"): A(s)
    TR = list(range(40, 52, 2)) + list(range(76, 102, 2)) + [64, 66, 68, 70, 28, 30, 72, 24, 26, 62]
    tn = [0]
    def tstamp(): A(f"s_memtime s[{TR[tn[0]]}:{TR[tn[0]]+1}]"); tn[0] += 1
    def stamp(i):
        if o.pad and i == 0: A("s_memrealtime s[98:99]")
        if i != 5: pad(i)
        if o.traj:
            if i in (0, 2, 4, 5): tstamp()
        elif o.stamps:
            A(f"s_memtime s[{40+2*i}:{41+2*i}]")
            A(f"s_memrealtime s[{80+2*i}:{81+2*i}]")
    L.append(KN + ":")
    stamp(0)
    A("s_load_dwordx4 s[28:31], s[0:1], 0")
    A("s_load_dwordx8 s[64:71], s[0:1], 16")
    A("s_load_dwordx2 s[72:73], s[0:1], 48")
    if o.stamps: A("s_load_dwordx2 s[74:75], s[0:1], 64")
    A("s_cmp_ge_u32 s2, 256")
    A("s_cbranch_scc1 L_end")
    A("v_lshrrev_b32 v56, 6, v0")
    A("v_and_b32 v0, 63, v0")
    A("v_readfirstlane_b32 s3, v56")
    A("s_and_b32 s4, s2, 7")
    A("s_lshr_b32 s5, s2, 3")
    A("s_and_b32 s6, s5, 3")
    A("s_lshr_b32 s33, s5, 2")
    A("s_lshl_b32 s7, s4, 3")
    A("s_add_u32 s7, s7, s33")
    A("s_lshl_b32 s7, s7, 18")
    A("s_lshl_b32 s6, s6, 8")
    A("s_lshl_b32 s59, s4, 16")
    A("s_lshl_b32 s58, s4, 7")
    A("v_lshrrev_b32 v56, 4, v0")
    A("v_and_b32 v57, 15, v0")
    A("v_and_b32 v58, 1, v56")
    A("v_lshlrev_b32 v58, 2, v58")
    A("v_or_b32 v58, s3, v58")
    A("v_lshlrev_b32 v58, 1, v58")
    A("v_xor_b32 v58, v58, v57")
    A("v_lshlrev_b32 v58, 4, v58")
    A("v_lshl_add_u32 v58, v56, 13, v58")
    A("s_lshl_b32 s33, s3, 10")
    A("s_add_u32 s34, s33, s6")
    A(f"v_add_u32 v{vDW}, s34, v58")
    A(f"s_add_u32 s60, s33, {WB}")
    A("s_and_b32 s35, s3, 1")
    A("s_lshr_b32 s36, s3, 1")
    A("v_lshrrev_b32 v59, 3, v0")
    A("v_and_b32 v60, 7, v0")
    A("v_lshrrev_b32 v61, 1, v59")
    A("s_lshl_b32 s37, s35, 2")
    A("v_add_u32 v61, s37, v61")
    A("v_xor_b32 v61, v61, v60")
    A("v_lshlrev_b32 v61, 4, v61")
    A("v_lshl_add_u32 v61, v59, 14, v61")
    A("s_lshl_b32 s37, s35, 17")
    A("s_add_u32 s37, s37, s7")
    A("s_lshl_b32 s38, s36, 10")
    A("s_add_u32 s39, s37, s38")
    A(f"v_add_u32 v{vDX}, s39, v61")
    A("s_lshl_b32 s61, s35, 13")
    A("s_add_u32 s61, s61, s38")
    A(f"s_mov_b32 s{sX+2}, 0x1000000")
    A(f"s_mov_b32 s{sX+3}, 0x20000")
    A(f"s_mov_b32 s{sW+2}, 0x180000")
    A(f"s_mov_b32 s{sW+3}, 0x20000")
    A("s_getpc_b64 s[56:57]")
    A("s_lshl_b32 s39, s5, 2")
    A("s_add_u32 s39, s39, s3")
    A("s_lshl_b32 s39, s39, 8")
    A(f"v_and_b32 v{vI}, 1, v0")
    A(f"v_lshl_add_u32 v{vI}, v{vI}, 7, s39")
    A("s_waitcnt lgkmcnt(0)")
    stamp(1)
    A(f"s_mov_b32 s{sX}, s28")
    A(f"s_and_b32 s{sX+1}, s29, 0xffff")
    A(f"s_mov_b32 s{sW}, s30")
    A(f"s_and_b32 s{sW+1}, s31, 0xffff")

    vm, lq = [], []
    tmpi = [0]
    def stmp(): tmpi[0] += 1; return 52 + tmpi[0] % 4
    def items(tok):
        r = []
        n, _, part = tok[1:].partition(".")
        if tok[0] == "w":
            w = int(n)
            for grp in ([int(c) for c in part] if part else range(6)):
                st = stmp()
                r.append(Op("d", f"buffer_load_dwordx4 v{vDW}, s[{sW}:{sW+3}], s{st} offen lds", ("W", w),
                            sal=[f"s_add_u32 m0, s60, {(w % 4) * 24576 + grp * 4096}",
                                 f"s_xor_b32 s{st}, s59, {SEQ[w] * 32768 + (grp // 2) * 524288 + (grp % 2) * 4096}"]))
        elif tok[0] == "x":
            q = int(n)
            for i in ([int(c) for c in part] if part else range(4 if q < N1 else NL // 2)):
                if q >= N1 or i % 2 == 0: st = stmp()
                if q < N1:
                    r.append(Op("d", f"buffer_load_dwordx4 v{vDX}, s[{sX}:{sX+3}], s{st} offen offset:{(i&1)*2048} nt lds", ("X", q, i),
                                sal=[f"s_add_u32 m0, s61, {XBASE[q] + (i >> 1) * 4096}", f"s_xor_b32 s{st}, s58, {(q >> 1) * 128 + (q & 1) * 8192 + (i >> 1) * 4096}"]))
                else:
                    r.append(Op("d", f"buffer_load_dwordx4 v{vDX}, s[{sX}:{sX+3}], s{st} offen nt lds", ("X", q, i),
                                sal=[f"s_add_u32 m0, s{61 if XBASE[q] < WB else 32}, {XBASE[q] + i * 2048}", f"s_xor_b32 s{st}, s58, {(q - N1) * 2048 + (N1 // 2 + i) * 128}"]))
        elif tok == "I":
            r.append(Op("d", f"global_load_dword v{vDump}, v{vI}, s[56:57]", ("F",)))
        elif tok == "O":
            r.append(Op("d", f"buffer_load_dword v{vDump}, off, s[{sO}:{sO+3}], s7 nt", ("F",)))
        elif tok == "L":
            r.append(Op("d", f"buffer_load_dword v{vPar}, s[{sP}:{sP+3}], s6 offen lds", ("P",), sal=[f"s_add_u32 m0, s39, {PL}"]))
        return r
    have = {}
    def salu_needed(sal): return [s for s in sal if have.get(s.split()[1]) != s]
    def emit_salu(s): A(s); have[s.split()[1]] = s
    def issue(op):
        if o.nodma and "lds" in op.text: return
        A(op.text); vm.append(op.tag)
    NST = o.nst
    def walk(rnd):
        if not NST: return
        A("s_mov_b64 vcc, 1")
        for k in range(4 * rnd, min(NST, 4 * rnd + 4)):
            A(f"s_cmp_eq_u32 s3, {k - 4 * rnd}")
            A(f"s_cbranch_scc1 L_stub{k}")
        L.append(f"L_back{rnd}:")
        A("s_mov_b64 vcc, 0")
    def setup():
        A(f"s_mov_b32 s32, {B2}")
        A("v_lshrrev_b32 v58, 1, v57")
        A("v_xor_b32 v58, v58, v56")
        A("v_lshlrev_b32 v58, 4, v58")
        A("v_and_b32 v59, 7, v57")
        A("v_lshl_add_u32 v58, v59, 7, v58")
        A("v_lshrrev_b32 v59, 3, v57")
        A(f"v_lshl_add_u32 v{vXa}, v59, 13, v58")
        A(f"v_xor_b32 v{vXb}, 64, v{vXa}")
        A(f"v_mul_u32_u24 v59, {JS}, v59")
        A(f"v_add3_u32 v{vXa2}, v59, v58, s32")
        A(f"v_xor_b32 v{vXb2}, 64, v{vXa2}")
        A(f"v_add_u32 v{vXa3}, 61440, v{vXa2}")
        A(f"v_add_u32 v{vXb3}, 61440, v{vXb2}")
        A(f"s_mul_i32 s32, s35, {JS}")
        A("s_add_u32 s32, s32, s38")
        A("v_lshrrev_b32 v58, 2, v57")
        A("v_and_b32 v59, 3, v0")
        A("v_and_b32 v62, 1, v56")
        A("v_lshl_add_u32 v62, v62, 2, v58")
        A("v_lshlrev_b32 v62, 1, v62")
        A("s_lshl_b32 s34, s3, 2")
        A("v_add_u32 v63, s34, v59")
        A("v_xor_b32 v63, v63, v62")
        A("v_lshlrev_b32 v63, 4, v63")
        A("v_lshl_add_u32 v63, v58, 10, v63")
        A("v_lshl_add_u32 v63, v56, 8, v63")
        A(f"v_add_u32 v{vW}, {WB}, v63")
        A(f"v_xor_b32 v{vW+1}, 8, v{vW}")
        A(f"v_add_u32 v{vW+2}, 49152, v{vW}")
        A(f"v_add_u32 v{vW+3}, 49152, v{vW+1}")
        A("s_lshl_b32 s33, s3, 6")
        A(f"v_lshl_add_u32 v{vPl}, v56, 4, s33")
        A("s_add_u32 s33, s6, s7")
        A(f"v_lshl_add_u32 v58, v57, 14, v{vPl}")
        A(f"v_add_u32 v{vOut}, s33, v58")
        A(f"s_mov_b32 s{sO}, s72")
        A(f"s_and_b32 s{sO+1}, s73, 0xffff")
        A(f"s_mov_b32 s{sO+2}, 0x1000000")
        A(f"s_mov_b32 s{sO+3}, 0x20000")
        A("s_mov_b32 s34, 0x3fb8aa3b")
        A("s_mov_b32 s35, s34")
        A("s_mov_b32 s36, 4096")
        A("s_mov_b32 s37, 8192")
        A("s_mov_b32 s38, 12288")
        for i in range(1, 4):
            A(f"s_cmp_eq_u32 s3, {i}")
            A(f"s_cselect_b64 s[64:65], s[{64+2*i}:{65+2*i}], s[64:65]")
        A(f"s_mov_b32 s{sP}, s64")
        A(f"s_and_b32 s{sP+1}, s65, 0xffff")
        A(f"s_mov_b32 s{sP+2}, 1024")
        A(f"s_mov_b32 s{sP+3}, 0x20000")
        A(f"v_lshlrev_b32 v{vPar}, 2, v0")
        A("s_lshl_b32 s39, s3, 8")
    pre, _, post = o.porder.partition("|")
    for tok in filter(None, pre.split(",")):
        if tok == "S": setup()
        elif tok in "AB": walk("AB".index(tok))
        else:
            for op in items(tok):
                for s in salu_needed(op.sal): emit_salu(s)
                if L[-1].split()[1].startswith("m0"): A("s_nop 0")
                issue(op)
    def qwait(q, tags, mx):
        idx = max([i for i, t in enumerate(q) if t in tags], default=-1)
        if idx < 0: return None
        n = len(q) - 1 - idx
        del q[:idx + 1]
        assert n <= mx, n
        return n
    vmwait = lambda tags: qwait(vm, tags, 63)
    lgwait = lambda tags: qwait(lq, tags, 15)
    def tagsof(tok):
        if tok == "L": return [("P",)]
        q, _, part = tok[1:].partition(".")
        return [("X", int(q), int(c)) for c in (part or "0123")]
    g0 = sum([tagsof(t) for t in o.g0.split(",") if t], [])
    n = vmwait([("W", 0)] + g0)
    if n is not None: A(f"s_waitcnt vmcnt({n})")
    A("s_barrier")
    stamp(2)

    mf, pos, touched = [], {}, set()
    def add(oo, T, c, k, breg, xtag):
        mf.append((acc(oo, T), wreg(wslot(om(c)), k, T), breg, [xtag, ("w", om(c), k, T)], (oo, T) not in touched))
        touched.add((oo, T))
    def p1x(r): return xr(1, r & 7)
    for t in range(N1):
        for oo in range(16):
            for ti, T in enumerate((0, 1) if oo % 2 == 0 else (1, 0)):
                for k in ((0, 1, 2) if ti == 0 else (2, 1, 0)):
                    r = oo + k - 1
                    if 0 <= r <= 15: add(oo, T, t, k, p1x(r), ("x", t, r))
            pos[("o", 16 * t + oo)] = len(mf) - 1
    chains, T = [], 0
    NB = 4 if o.outord else 2
    NW = NL + 1 + fown
    def yr(s_, l):
        b = s_ % NB
        return xr(b, l) if b < 2 and not (o.outord and b == 1) else xr(1, l) if (b == 2 and o.outord) else 256 + 24 * NW + (b // 2) * NL * 4 + l * 4
    if o.outord:
        for oo in range(16):
            for ti, T in enumerate((0, 1) if oo % 2 == 0 else (1, 0)):
                chains += [(oo + k - 1, k, T) for k in ((0, 1, 2) if ti == 0 else (2, 1, 0)) if 0 <= oo + k - 1 <= 15]
    else:
        for s in range(14):
            for k in (2, 1, 0):
                if 0 <= s + 1 - k <= 15: chains += [(s, k, T), (s, k, 1 - T)]; T = 1 - T
        chains += [(14, 2, T), (14, 2, 1 - T)]
        for g1, g2 in (((14, 1), (15, 2)), ((14, 0), (15, 1))):
            chains += [g1 + (T,), g2 + (T,), g1 + (1 - T,), g2 + (1 - T,)] if o.tend else [g1 + (T,), g1 + (1 - T,), g2 + (1 - T,), g2 + (T,)]
    done = {}
    for n_, (s, k, T) in enumerate(chains):
        pos.setdefault(("s", s + 1 - k if o.outord else s), len(mf))
        for l in (range(NL) if n_ % 2 == 0 else range(NL - 1, -1, -1)): add(s + 1 - k, T, N1 + l, k, yr(s, l), ("y", s, l))
        done[(s + 1 - k, T)] = len(mf) - 1
    NM = len(mf)
    assert NM == 1472
    firstuse, lastuse = {}, {}
    for i, m in enumerate(mf):
        for tg in m[3]: firstuse.setdefault(tg, i); lastuse[tg] = i
    bp = kv(o.bpos)
    H = {h: pos[("o", bp.get(h, 16 * (h // 2) + (o.b1 if h % 2 else o.b0)))] for h in HS}
    Q = [pos[("s", int(s))] + o.b2 for s in o.qs.split(",")]
    allb = [H[h] for h in HS] + Q
    assert allb == sorted(allb)
    nxt = lambda g: min(b for b in allb if b > g)
    wtags = lambda w: [("w", w, k, T) for k in range(3) for T in range(2)]
    def xtags(q):
        if q < N1: return [("x", t, r) for t in (q & ~1, q | 1) for r in range(8 * (q & 1), 8 * (q & 1) + 8)]
        return [("y", s, l) for s in (2 * (q - N1), 2 * (q - N1) + 1) for l in range(NL)]
    land, issue_at, prev = {}, {}, {}
    early = set(x.partition("@")[0].partition(".")[0] for x in (pre + "," + post).split(","))
    hof = {c: h for h, c in hs.items()}
    for w in range(16): land[("W", w)] = -1 if w == 0 else H[hof[SEQ[w]]]
    for w in range(16):
        if w >= 4: issue_at[f"w{w}"] = nxt(land[("W", w - 4)]); prev[f"w{w}"] = wtags(w - 4)
        elif f"w{w}" not in early: issue_at[f"w{w}"] = allb[0]; prev[f"w{w}"] = []
    xl = kv(o.xl)
    for q in range(NU):
        for i in range(4): land[("X", q, i)] = -1 if q == 0 else H[2 * q - 2] if q <= N1 else Q[xl[q - N1]]
    land[("P",)] = H[0]
    for t in g0: land[t] = -1
    E = []
    for x in filter(None, o.eb.split(",")):
        g, _, toks = x.partition(":")
        E.append(int(g))
        for t in filter(None, toks.split("+")):
            for tg in tagsof(t): land[tg] = int(g)
    for q in range(3, N1): issue_at[f"x{q}"] = H[2 * (q - 3)]; prev[f"x{q}"] = xtags(q - 4) if q >= 4 else []
    xi = kv(o.xi)
    for p in range(8):
        q = N1 + p
        if q in XPREV:
            pq = XPREV[q]
            g = H[2 * pq + 2] if 2 * pq + 2 in H else Q[0] if pq <= N1 else None
            prev[f"x{q}"] = xtags(pq)
        else:
            ws = [w for w in range(12, 16) if WB + (w % 4) * 24576 < XBASE[q] + 2 * JS and XBASE[q] < WB + (w % 4 + 1) * 24576]
            g = max(nxt(land[("W", w)]) for w in ws)
            prev[f"x{q}"] = sum([wtags(w) for w in ws], [])
        issue_at[f"x{q}"] = max(g, allb[len(HS) + xi[p]] if p in xi else g)
    ptags = [("p", i) for i in range(4)]
    prel = issue_at["x3"] = nxt(land[("P",)]); prev["x3"] = ptags
    bars = {g: ([t for t, b in land.items() if b == g], sum([prev[k] for k, b in issue_at.items() if b == g], [])) for g in allb + E}
    dmas = []
    for tok in filter(None, post.split(",")):
        for op in items(tok): op.earliest = -1; dmas.append(op)
    for g in allb:
        for k in sorted([k for k, b in issue_at.items() if b == g], key=lambda k: land[("W", int(k[1:])) if k[0] == "w" else ("X", int(k[1:]), 0)]):
            for op in items(k): op.earliest = g; dmas.append(op)
        if o.otouch >= 0 and g == H[o.otouch]:
            for op in items("O"): op.earliest = g; dmas.append(op)
    reads = []
    def rd_x(tag, dst, q, off, kk, e):
        b = XBASE[q]
        v, b = ((vXa, vXb)[kk], b) if b < WB else ((vXa2, vXb2)[kk], b - B2) if b < B3 else ((vXa3, vXb3)[kk], b - B3)
        reads.append(Op("r", f"ds_read_b128 {r4(dst)}, v{v} offset:{b + off}", tag, max(e, land[("X", q, off // 2048)])))
    for w in range(16):
        for k in (1, 2, 0):
            for T in (0, 1):
                for h in (0, 1):
                    r = wreg(wslot(w), k, T) + 2 * h
                    reads.append(Op("t", f"ds_read_b64_tr_b16 a[{r}:{r+1}], v{vW + T + (2 if w % 4 >= 2 else 0)} offset:{(w%2)*24576 + k*8192 + h*4096}",
                                    ("w", w, k, T), land[("W", w)]))
    for t in range(N1):
        for r in range(16):
            e = max(lastuse.get(("x", t, r - 8) if r >= 8 else ("x", t - 1, r + 8), -1), firstuse[("x", t, r)] - o.xlead)
            rd_x(("x", t, r), p1x(r), (t & ~1) + (r >> 3), (r & 7) * 1024, t & 1, e)
    for s in range(16):
        for l in range(NL):
            e = max(firstuse[("y", s, l)] - o.ylead, lastuse.get(("y", s - NB, l), -1))
            if xr(1, 0) <= yr(s, l) < 256: e = max(e, lastuse[("x", N1 - 1, 8 + l)])
            rd_x(("y", s, l), yr(s, l), N1 + (s >> 1), (s & 1) * 1024 + (l >> 1) * 2048, l & 1, e)
    for i in range(4):
        reads.append(Op("r", f"ds_read_b128 v[{16+4*i}:{19+4*i}], v{vPl} offset:{PL + i * 256}", ("p", i), land[("P",)]))
        firstuse[("p", i)] = NM
    dl = dict(firstuse)
    for g, (_, tl) in bars.items():
        for tg in tl: dl[tg] = min(dl[tg], g + 1)
    reads.sort(key=lambda r: (dl[r.tag], r.earliest))
    valu, stores = [], []
    def V(txt, e, cost=1, kind="v", need=None, dep=(), grp=0, pk=None):
        valu.append(Op(kind, txt, None, e, need, cost, dep=dep, grp=grp, pk=pk)); return valu[-1]
    last = None
    def P(txt, cost=1):
        nonlocal last
        last = V(txt, prel, cost, dep=[last] if last else [], grp=-1)
    for e in range(8):
        d = e >> 1; b = PTMP + (e % 2) * 4
        for j, src in enumerate((20, 24, 16, 28)):
            P(f"v_and_b32 v{b+j}, 0xffff0000, v{src+d}" if e & 1 else f"v_lshlrev_b32 v{b+j}, 16, v{src+d}")
        P(f"v_add_f32 v{b}, 0x3727c5ac, v{b}")
        P(f"v_sqrt_f32 v{b}, v{b}", 2)
        P(f"v_rcp_f32 v{b}, v{b}", 2)
        P(f"v_mul_f32 v{b+2}, s34, v{b+2}")
        P(f"v_mul_f32 v{b}, v{b+1}, v{b}")
        P(f"v_mul_f32 v{b+3}, s34, v{b+3}")
        P(f"v_mul_f32 v{PS+e}, s34, v{b}")
        P(f"v_fma_f32 v{PT+e}, -v{b+2}, v{b}, v{b+3}")
    for n_, oo in enumerate(sorted(range(16), key=lambda oo: max(done[(oo, 0)], done[(oo, 1)]))):
        te = TE + (n_ % 2) * 8; ob = acc(oo, 0) + 2
        cv = []
        for T in sorted((0, 1), key=lambda T: done[(oo, T)]):
            e0 = done[(oo, T)] + 2
            a = acc(oo, T); tt = te + T * 4; c = T * 4
            pr = lambda x: f"v[{x}:{x+1}]"
            z = [V(f"v_fma_f32 v{a+r}, v{a+r}, v{PS+c+r}, v{PT+c+r}", e0, need=done[(oo, T)], grp=n_,
                   pk=f"v_pk_fma_f32 {pr(a+r)}, {pr(a+r)}, {pr(PS+c+r)}, {pr(PT+c+r)}" if r % 2 == 0 else None) for r in range(4)]
            x = [V(f"v_exp_f32 v{tt+r}, -v{a+r}", e0, 2, dep=[z[r]], grp=n_) for r in range(4)]
            d = [V(f"v_fma_f32 v{tt+r}, v{tt+r}, s34, s34", e0, dep=[x[r]], grp=n_,
                   pk=f"v_pk_fma_f32 {pr(tt+r)}, {pr(tt+r)}, s[34:35], s[34:35]" if r % 2 == 0 else None) for r in range(4)]
            q = [V(f"v_rcp_f32 v{tt+r}, v{tt+r}", e0, 2, dep=[d[r]], grp=n_) for r in range(4)]
            m = [V(f"v_mul_f32 v{a+r}, v{a+r}, v{tt+r}", e0, dep=[q[r]], grp=n_,
                   pk=f"v_pk_mul_f32 {pr(a+r)}, {pr(a+r)}, {pr(tt+r)}" if r % 2 == 0 else None) for r in range(4)]
            for p in ((1, 0) if T == 0 else (0, 1)):
                cv.append(V(f"v_cvt_pk_bf16_f32 v{ob+T*2+p}, v{a+2*p}, v{a+2*p+1}", e0, dep=m[2*p:2*p+2] + cv[-1:] * (len(cv) % 2), grp=n_))
        if not o.nostore:
            stores.append(Op("st", f"buffer_store_dwordx4 v[{ob}:{ob+3}], v{vOut}, s[{sO}:{sO+3}], {['0','s36','s37','s38'][oo//4]} offen offset:{(oo%4)*1024} {o.stflag}", dep=cv, grp=n_))
    first = sorted([r for r in reads if r.tag[:2] == ("w", 0)], key=lambda r: firstuse[r.tag])
    fx = [r for r in reads if r.tag in (("x", 0, 0), ("x", 0, 1), ("x", 0, 2))]
    for op in fx[:1] + first[:2] + fx[1:2] + first[2:8] + fx[2:] + first[8:]:
        A(op.text); lq.append(op.tag); reads.remove(op)
    at = {}
    def rdy(v, i):
        if v.earliest > i or (v.need is not None and len(L) - at[v.need] - 1 < 8): return False
        return all(d.at is not None and len(L) - d.at - 1 >= (0 if v.grp < 0 and d.cost == 1 else 1) for d in v.dep)
    def pick(i, room, kind="v"):
        g0_ = valu[0].grp if valu else 0
        for v in valu:
            if v.grp > g0_ + (1 if o.look else 0): break
            if v.kind == kind and v.cost <= room and rdy(v, i): return v
            if not o.look: break
        return None
    def put(v): v.at = len(L); A(v.text); valu.remove(v)
    A(f"s_waitcnt lgkmcnt({lgwait(mf[0][3])})")
    di = over = 0; staged = False; lastdma = -10; firststore = None; lastst = -100
    for i in range(NM):
        if i == pos[("s", 0)]: stamp(3)
        at[i] = len(L)
        D, a, b, needs, fst = mf[i]
        if not o.nomfma: A(f"v_mfma_f32_16x16x32_bf16 v[{D}:{D+3}], a[{a}:{a+3}], {r4(b)}, {'0' if fst else f'v[{D}:{D+3}]'}")
        slot = 1
        if i in bars:
            assert not [r.tag for r in reads if r.tag in bars[i][1]], (i, [r.tag for r in reads if r.tag in bars[i][1]])
            assert not [d.tag for d in dmas[di:] if d.tag in bars[i][0]], (i, "load not issued before its barrier", [d.tag for d in dmas[di:] if d.tag in bars[i][0]])
            nv, nl = vmwait(bars[i][0]), lgwait(bars[i][1])
            w = " ".join(x for x in (f"vmcnt({nv})" if nv is not None else "", f"lgkmcnt({nl})" if nl is not None else "") if x)
            if w: A("s_waitcnt " + w); slot += 1
            A("s_barrier"); slot += 1
            if o.traj: tstamp()
        if i + 1 < NM:
            assert not [r.tag for r in reads if r.tag in mf[i + 1][3]], (i, mf[i + 1][3])
            nl = lgwait(mf[i + 1][3])
            if nl is not None: A(f"s_waitcnt lgkmcnt({nl})"); slot += 1
        if not staged and di < len(dmas) and dmas[di].earliest <= i and not salu_needed(dmas[di].sal): staged = True
        sp = (o.dspace0 if dmas[di].earliest < 0 else o.dspace if i < H[o.dlate] else o.dspace2) / 10 if di < len(dmas) else 0
        if staged and slot == 1 and i >= lastdma + sp:
            lastdma = lastdma + sp if i < lastdma + sp + 1.5 else i
            issue(dmas[di]); di += 1; staged = False
            continue
        if stores and slot == 1 and di == len(dmas) and i >= pos[("s", 0)] + o.st0 and i >= lastst + o.stsp and rdy(stores[0], i):
            A(stores.pop(0).text); vm.append(("S",)); lastst = i
            if firststore is None: firststore = i
            continue
        rd = next((r for r in reads if r.earliest <= i), None)
        if not staged and di < len(dmas) and dmas[di].earliest <= i:
            need = salu_needed(dmas[di].sal)
            vr = pick(i, 2)
            room = 3 if not (rd or vr) else 2 if not (rd and vr) and not (vr and vr.cost == 2) else 1
            while need and slot <= room: emit_salu(need.pop(0)); slot += 1
            if not need: staged = True
        slot = max(slot, 2)
        if rd and slot <= 3 and len(lq) < 15:
            A(rd.text); lq.append(rd.tag); reads.remove(rd); slot += 1
            if dl[rd.tag] - i < o.warn: print(f"; WARN late read {rd.tag} gap {i} deadline {dl[rd.tag]}", file=sys.stderr)
        while slot < 4:
            v = pick(i, 4 - slot)
            if not v: break
            put(v); slot += v.cost
        over += max(0, slot - 4)
    assert not reads and di == len(dmas)
    print(f"; leftover VALU {len(valu)} (cost {sum(v.cost for v in valu)}), overflow {over}, first store {firststore}, bars {allb}", file=sys.stderr)
    stamp(4)
    print(f"; stores left {len(stores)}; last load issued at gap {lastdma}", file=sys.stderr)
    i = 0
    while i < len(valu):
        v = valu[i]
        while stores and all(d.at is not None for d in stores[0].dep): A(stores.pop(0).text)
        if v.need is not None and not o.nomfma:
            gap = 8 - (len(L) - at[v.need] - 1)
            if gap > 0: A(f"s_nop {gap - 1}"); at[v.need] -= 8
        two = v.pk and i + 1 < len(valu) and valu[i + 1].text.split()[0] == v.text.split()[0] and not valu[i + 1].pk and o.pk
        if any(d.at == len(L) - 1 and d.cost == 2 for d in v.dep + (valu[i + 1].dep if two else [])): A("s_nop 0")
        v.at = len(L)
        if two: valu[i + 1].at = len(L); A(v.pk); i += 2
        else: A(v.text); i += 1
    for st in stores: A(st.text)
    pad(5)
    if o.stamps:
        A("s_waitcnt vmcnt(0)")
        stamp(5)
        A("s_cmp_lg_u32 s3, 0")
        A("s_cbranch_scc1 L_end")
        for s in ("s_mov_b32 s20, s74", "s_and_b32 s21, s75, 0xffff", "s_mov_b32 s22, 0x100000", "s_waitcnt lgkmcnt(0)",
                  "s_lshl_b32 s33, s2, 7", "v_mov_b32 v6, 0"): A(s)
        for i in range(tn[0]):
            A(f"v_mov_b32 v12, s{TR[i]}")
            A(f"buffer_store_dword v12, v6, s[20:23], s33 offen offset:{4*i}")
        for i in range(0 if o.traj else 6):
            base = 40 + 4 * i if i < 3 else 80 + 4 * (i - 3)
            for jx in range(4): A(f"v_mov_b32 v{12+jx}, s{base+jx}")
            A(f"buffer_store_dwordx4 v[12:15], v6, s[20:23], s33 offen offset:{16*i}")
            A("s_nop 1")
    L.append("L_end:")
    A("s_endpgm")
    A(".fill 2048, 4, 0xbf810000")
    if not o.nomfma: check_hazards(L)
    if NST: L = insert_stubs(L, NST, o.ioff)
    return HEADER + f"; @launch grid=(256,1,1) block=(256,1,1) lds={LDS}\n" + \
        '.amdgcn_target "amdgcn-amd-amdhsa--gfx950"\n.text\n' + \
        f".globl {KN}\n.p2align 12\n.type {KN},@function\n" + "\n".join(L) + "\n" + \
        f""".section .rodata,"a"
.p2align 6
.amdhsa_kernel {KN}
  .amdhsa_next_free_vgpr {256 + 24 * NW + (8 * NL if o.outord else 0)}
  .amdhsa_next_free_sgpr 102
  .amdhsa_accum_offset 256
  .amdhsa_group_segment_fixed_size 0
  .amdhsa_kernarg_size 72
  .amdhsa_user_sgpr_count 2
  .amdhsa_user_sgpr_kernarg_segment_ptr 1
  .amdhsa_system_sgpr_workgroup_id_x 1
  .amdhsa_float_denorm_mode_32 3
.end_amdhsa_kernel
"""

def insert_stubs(L, n, base):
    import subprocess, tempfile
    txt = '.amdgcn_target "amdgcn-amd-amdhsa--gfx950"\n.text\n' + "\n".join(L) + "\n" + "".join(f"L_stub{k}:\n" for k in range(n))
    d = tempfile.mkdtemp()
    open(d + "/a.s", "w").write(txt)
    subprocess.check_call(["clang", "-x", "assembler", "-target", "amdgcn-amd-amdhsa", "-mcpu=gfx950", "-c", d + "/a.s", "-o", d + "/a.o"])
    dis = subprocess.check_output(["llvm-objdump", "-d", "--mcpu=gfx950", d + "/a.o"], text=True)
    addrs = [int(m.group(1), 16) for m in re.finditer(r"// ([0-9A-F]{12}):", dis)]
    amap = dict(zip([i for i, x in enumerate(L) if x.startswith("    ") and not x.strip().startswith(".")], addrs))
    out, k = [], 0
    for i, x in enumerate(L):
        if k < n and i in amap and base + amap[i] + 4 * k >= (base // 0x1000 + 1 + k) * 0x1000:
            out.append(f"L_stub{k}:"); out.append(f"    s_cbranch_vccnz L_back{k // 4}"); k += 1
        out.append(x)
    assert k == n, k
    return out

if __name__ == "__main__":
    ap = argparse.ArgumentParser()
    ap.add_argument("out")
    for f in ("traj", "stamps", "nomfma", "nodma", "nostore"): ap.add_argument("--" + f, action="store_true")
    for k, v in dict(pad="", stflag="sc1 nt", porder="w0,x0.01,I,x0.23,S,A,x1,L,w1.01,B|w1.2345,x2,w2", g0="x0.01",
                     eb="8:x0.23,32:x1.01,56:x1.23+L", bpos="0:12", fh="5,7,9,11,13,15", place="r,r,0,1,2,3,4,5", qs="0,4",
                     xi="", xl="1:0,2:0,3:0,4:1,5:1,6:1,7:1").items(): ap.add_argument("--" + k, default=v)
    for k, v in dict(st0=200, stsp=20, dlate=14, otouch=-1, n1=10, nst=6, ioff=0x2300, b0=5, b1=13, b2=4, xlead=16, ylead=30, dspace=58, dspace0=40, dspace2=70,
                     warn=8, holdst=1, look=1, pk=1, tend=1, outord=1).items(): ap.add_argument("--" + k, type=int, default=v)
    o = ap.parse_args()
    open(o.out, "w").write(gen(o))
```

```python
import sys, argparse, re
from hazard import check_hazards

KN = "standalone__batchnorm__sampling_kernel"
HEADER = """; conv1d(K=3) as MFMA GEMM + folded BatchNorm + SiLU.  Generated by tools/gen4.py (hand-written generator).
"""
WB = 65536
WB2 = WB + 8192
LDS = WB + 4 * 24576
PL = 3 * 16384
sX, sW, sO, sP = 8, 12, 16, 20
vXa, vXb, vW = 1, 2, 3
vDW, vDX, vOut, vPar = 7, 8, 10, 11
vXa2, vXb2, vXa3, vXb3 = 12, 13, 14, 15
TE, OB = 16, 32
vPl, vDump, vI = 37, 38, 39
PS, PT, PTMP = 40, 48, 56
XR, ACC = 64, 128
def acc(o, T): return ACC + (o * 2 + T) * 4
def wreg(slot, k, T): return slot * 24 + (k * 2 + T) * 4
def xr(b, l): return XR + b * 32 + l * 4
def r4(x): return f"v[{x}:{x+3}]" if x < 256 else f"a[{x-256}:{x-253}]"
def kv(s): return dict((int(a), int(b)) for a, b in (x.split(":") for x in s.split(",") if x))

class Op:
    def __init__(self, kind, text, tag=None, earliest=0, need=None, cost=1, sal=(), dep=(), grp=0, pk=None):
        self.kind, self.text, self.tag, self.earliest, self.need, self.cost = kind, text, tag, earliest, need, cost
        self.sal, self.dep, self.grp, self.pk, self.at = list(sal), list(dep), grp, pk, None

def gen(o):
    N1 = o.n1; NL = 16 - N1; NU = N1 + 8
    fh = [int(x) for x in o.fh.split(",")]
    fown = fh[-1] < 2 * N1 - 2
    assert len(fh) == NL
    hs = {2 * t: t + 1 for t in range(N1 - 1)}
    for l, h in enumerate(fh): assert h not in hs; hs[h] = N1 + l
    SEQ = [0] + [hs[h] for h in sorted(hs)]
    HS = sorted(set(hs) | {2 * N1 - 2})
    om = SEQ.index
    def wslot(w): c = SEQ[w]; return c % 2 if c < N1 else 0 if c == 15 and not fown else c - N1 + 2
    place = o.place.split(",")
    JS = 8192 if NL == 8 else NL * 1024
    WPOS = [WB2, WB + 24576, WB + 49152] if NL == 8 else [WB + 2 * JS * j for j in range(8)]
    XBASE = {q: (q % 4) * 16384 for q in range(N1)}
    XPREV, nr = {}, N1
    for p, w in enumerate(place):
        if w == "r": XBASE[N1 + p] = (nr % 4) * 16384; XPREV[N1 + p] = max(q for q in range(N1 + p) if XBASE.get(q) == XBASE[N1 + p]); nr += 1
        else: XBASE[N1 + p] = WPOS[int(w)]
    B2 = WPOS[0]; B3 = B2 + 61440
    L = []
    A = lambda s: L.append("    " + s)
    def pad(i):
        if o.pad and int(o.pad.split(":")[0]) == i:
            n = int(float(o.pad.split(":")[1]) * 100)
            if i == 5: A("s_waitcnt vmcnt(0)")
            L.append(f"L_pad{i}:")
            for s in ("s_sleep 1", "s_memrealtime s[96:97]", "s_waitcnt lgkmcnt(0)", "s_sub_u32 s96, s96, s98",
                      f"s_cmp_lt_u32 s96, {n}", f"s_cbranch_scc1 L_pad{i}"): A(s)
    TR = list(range(40, 52, 2)) + list(range(80, 102, 2)) + [64, 66, 68, 70, 28, 30, 72, 24, 26, 62]
    tn = [0]
    def tstamp(): A(f"s_memtime s[{TR[tn[0]]}:{TR[tn[0]]+1}]"); tn[0] += 1
    def stamp(i):
        if o.pad and i == 0: A("s_memrealtime s[98:99]")
        if i != 5: pad(i)
        if o.traj:
            if i in (0, 2, 4, 5): tstamp()
        elif o.stamps:
            A(f"s_memtime s[{40+2*i}:{41+2*i}]")
            A(f"s_memrealtime s[{80+2*i}:{81+2*i}]")
    L.append(KN + ":")
    stamp(0)
    A("s_load_dwordx4 s[28:31], s[0:1], 0")
    A("s_load_dwordx8 s[64:71], s[0:1], 16")
    A("s_load_dwordx2 s[72:73], s[0:1], 48")
    if o.stamps: A("s_load_dwordx2 s[74:75], s[0:1], 64")
    A("s_cmp_ge_u32 s2, 256")
    A("s_cbranch_scc1 L_end")
    A("v_lshrrev_b32 v56, 6, v0")
    A("v_and_b32 v0, 63, v0")
    A("v_readfirstlane_b32 s3, v56")
    A("s_and_b32 s4, s2, 7")
    A("s_lshr_b32 s5, s2, 3")
    A("s_and_b32 s6, s5, 3")
    A("s_lshr_b32 s33, s5, 2")
    A("s_lshl_b32 s7, s4, 3")
    A("s_add_u32 s7, s7, s33")
    A("s_lshl_b32 s7, s7, 18")
    A("s_lshl_b32 s6, s6, 8")
    A("s_lshl_b32 s59, s4, 16")
    A("s_lshl_b32 s58, s4, 7")
    A("v_lshrrev_b32 v56, 4, v0")
    A("v_and_b32 v57, 15, v0")
    A("v_and_b32 v58, 1, v56")
    A("v_lshlrev_b32 v58, 2, v58")
    A("v_or_b32 v58, s3, v58")
    A("v_lshlrev_b32 v58, 1, v58")
    A("v_xor_b32 v58, v58, v57")
    A("v_lshlrev_b32 v58, 4, v58")
    A("v_lshl_add_u32 v58, v56, 13, v58")
    A("s_lshl_b32 s33, s3, 10")
    A("s_add_u32 s34, s33, s6")
    A(f"v_add_u32 v{vDW}, s34, v58")
    A(f"s_add_u32 s60, s33, {WB}")
    A("s_and_b32 s35, s3, 1")
    A("s_lshr_b32 s36, s3, 1")
    A("v_lshrrev_b32 v59, 3, v0")
    A("v_and_b32 v60, 7, v0")
    A("v_lshrrev_b32 v61, 1, v59")
    A("s_lshl_b32 s37, s35, 2")
    A("v_add_u32 v61, s37, v61")
    A("v_xor_b32 v61, v61, v60")
    A("v_lshlrev_b32 v61, 4, v61")
    A("v_lshl_add_u32 v61, v59, 14, v61")
    A("s_lshl_b32 s37, s35, 17")
    A("s_add_u32 s37, s37, s7")
    A("s_lshl_b32 s38, s36, 10")
    A("s_add_u32 s39, s37, s38")
    A(f"v_add_u32 v{vDX}, s39, v61")
    A("s_lshl_b32 s61, s35, 13")
    A("s_add_u32 s61, s61, s38")
    A(f"s_mov_b32 s{sX+2}, 0x1000000")
    A(f"s_mov_b32 s{sX+3}, 0x20000")
    A(f"s_mov_b32 s{sW+2}, 0x180000")
    A(f"s_mov_b32 s{sW+3}, 0x20000")
    A("s_getpc_b64 s[56:57]")
    A("s_lshl_b32 s39, s5, 2")
    A("s_add_u32 s39, s39, s3")
    A("s_lshl_b32 s39, s39, 8")
    A(f"v_and_b32 v{vI}, 1, v0")
    A(f"v_lshl_add_u32 v{vI}, v{vI}, 7, s39")
    A("s_waitcnt lgkmcnt(0)")
    stamp(1)
    A(f"s_mov_b32 s{sX}, s28")
    A(f"s_and_b32 s{sX+1}, s29, 0xffff")
    A(f"s_mov_b32 s{sW}, s30")
    A(f"s_and_b32 s{sW+1}, s31, 0xffff")

    vm, lq = [], []
    tmpi = [0]
    def stmp(): tmpi[0] += 1; return 52 + tmpi[0] % 4
    def items(tok):
        r = []
        n, _, part = tok[1:].partition(".")
        if tok[0] == "w":
            w = int(n)
            for grp in ([int(c) for c in part] if part else range(6)):
                st = stmp()
                r.append(Op("d", f"buffer_load_dwordx4 v{vDW}, s[{sW}:{sW+3}], s{st} offen lds", ("W", w),
                            sal=[f"s_add_u32 m0, s60, {(w % 4) * 24576 + grp * 4096}",
                                 f"s_xor_b32 s{st}, s59, {SEQ[w] * 32768 + (grp // 2) * 524288 + (grp % 2) * 4096}"]))
        elif tok[0] == "x":
            q = int(n)
            for i in ([int(c) for c in part] if part else range(4 if q < N1 else NL // 2)):
                if q >= N1 or i % 2 == 0 or not r: st = stmp()
                if q < N1:
                    r.append(Op("d", f"buffer_load_dwordx4 v{vDX}, s[{sX}:{sX+3}], s{st} offen offset:{(i&1)*2048} nt lds", ("X", q, i),
                                sal=[f"s_add_u32 m0, s61, {XBASE[q] + (i >> 1) * 4096}", f"s_xor_b32 s{st}, s58, {(q >> 1) * 128 + (q & 1) * 8192 + (i >> 1) * 4096}"]))
                else:
                    r.append(Op("d", f"buffer_load_dwordx4 v{vDX}, s[{sX}:{sX+3}], s{st} offen nt lds", ("X", q, i),
                                sal=[f"s_add_u32 m0, s{61 if XBASE[q] < WB else 32}, {XBASE[q] + i * 2048}", f"s_xor_b32 s{st}, s58, {(q - N1) * 2048 + (N1 // 2 + i) * 128}"]))
        elif tok == "I":
            r.append(Op("d", f"global_load_dword v{vDump}, v{vI}, s[56:57]", ("F",)))
        elif tok == "O":
            r.append(Op("d", f"buffer_load_dword v{vDump}, off, s[{sO}:{sO+3}], s7 nt", ("F",)))
        elif tok == "L":
            r.append(Op("d", f"buffer_load_dword v{vPar}, s[{sP}:{sP+3}], s6 offen lds", ("P",), sal=[f"s_add_u32 m0, s39, {PL}"]))
        return r
    have = {}
    def salu_needed(sal): return [s for s in sal if have.get(s.split()[1]) != s]
    def emit_salu(s): A(s); have[s.split()[1]] = s
    def issue(op):
        if o.nodma and "lds" in op.text: return
        A(op.text); vm.append(op.tag)
    NST = o.nst
    def walk(rnd):
        if not NST: return
        A("s_mov_b64 vcc, 1")
        if rnd == 2:
            for k in range(NST):
                A(f"s_cmp_eq_u32 s33, {k}")
                A(f"s_cbranch_scc1 L_stub{k}")
            L.append("L_back0:"); L.append("L_back1:")
            A("s_mov_b64 vcc, 0")
            return
        for k in range(4 * rnd, min(NST, 4 * rnd + 4)):
            A(f"s_cmp_eq_u32 s3, {k - 4 * rnd}")
            A(f"s_cbranch_scc1 L_stub{k}")
        L.append(f"L_back{rnd}:")
        A("s_mov_b64 vcc, 0")
    def setup():
        A(f"s_mov_b32 s32, {B2}")
        A("v_lshrrev_b32 v58, 1, v57")
        A("v_xor_b32 v58, v58, v56")
        A("v_lshlrev_b32 v58, 4, v58")
        A("v_and_b32 v59, 7, v57")
        A("v_lshl_add_u32 v58, v59, 7, v58")
        A("v_lshrrev_b32 v59, 3, v57")
        A(f"v_lshl_add_u32 v{vXa}, v59, 13, v58")
        A(f"v_xor_b32 v{vXb}, 64, v{vXa}")
        A(f"v_mul_u32_u24 v59, {JS}, v59")
        A(f"v_add3_u32 v{vXa2}, v59, v58, s32")
        A(f"v_xor_b32 v{vXb2}, 64, v{vXa2}")
        A(f"v_add_u32 v{vXa3}, 61440, v{vXa2}")
        A(f"v_add_u32 v{vXb3}, 61440, v{vXb2}")
        A(f"s_mul_i32 s32, s35, {JS}")
        A("s_add_u32 s32, s32, s38")
        A("v_lshrrev_b32 v58, 2, v57")
        A("v_and_b32 v59, 3, v0")
        A("v_and_b32 v62, 1, v56")
        A("v_lshl_add_u32 v62, v62, 2, v58")
        A("v_lshlrev_b32 v62, 1, v62")
        A("s_lshl_b32 s34, s3, 2")
        A("v_add_u32 v63, s34, v59")
        A("v_xor_b32 v63, v63, v62")
        A("v_lshlrev_b32 v63, 4, v63")
        A("v_lshl_add_u32 v63, v58, 10, v63")
        A("v_lshl_add_u32 v63, v56, 8, v63")
        A(f"v_add_u32 v{vW}, {WB}, v63")
        A(f"v_xor_b32 v{vW+1}, 8, v{vW}")
        A(f"v_add_u32 v{vW+2}, 49152, v{vW}")
        A(f"v_add_u32 v{vW+3}, 49152, v{vW+1}")
        A("s_lshl_b32 s33, s3, 6")
        A(f"v_lshl_add_u32 v{vPl}, v56, 4, s33")
        A("s_add_u32 s33, s6, s7")
        A(f"v_lshl_add_u32 v58, v57, 14, v{vPl}")
        A(f"v_add_u32 v{vOut}, s33, v58")
        A(f"s_mov_b32 s{sO}, s72")
        A(f"s_and_b32 s{sO+1}, s73, 0xffff")
        A(f"s_mov_b32 s{sO+2}, 0x1000000")
        A(f"s_mov_b32 s{sO+3}, 0x20000")
        A(f"s_mov_b32 s34, {'0xbfb8aa3b' if o.neg else '0x3fb8aa3b'}")
        A("s_mov_b32 s35, s34")
        A("s_mov_b32 s36, 4096")
        A("s_mov_b32 s37, 8192")
        A("s_mov_b32 s38, 12288")
        for i in range(1, 4):
            A(f"s_cmp_eq_u32 s3, {i}")
            A(f"s_cselect_b64 s[64:65], s[{64+2*i}:{65+2*i}], s[64:65]")
        A(f"s_mov_b32 s{sP}, s64")
        A(f"s_and_b32 s{sP+1}, s65, 0xffff")
        A(f"s_mov_b32 s{sP+2}, 1024")
        A(f"s_mov_b32 s{sP+3}, 0x20000")
        A(f"v_lshlrev_b32 v{vPar}, 2, v0")
        A("s_lshl_b32 s39, s3, 8")
        A("s_and_b32 s33, s5, 4")
        A("s_add_u32 s33, s33, s3")
        A("s_cmp_ge_u32 s33, 6")
        A("s_cselect_b32 s32, 6, 0" .replace("s32", "s63"))
        A("s_sub_u32 s33, s33, s63")
    pre, _, post = o.porder.partition("|")
    for tok in filter(None, pre.split(",")):
        if tok == "S": setup()
        elif tok in "ABC": walk("ABC".index(tok))
        else:
            for op in items(tok):
                for s in salu_needed(op.sal): emit_salu(s)
                if L[-1].split()[1].startswith("m0"): A("s_nop 0")
                issue(op)
    def qwait(q, tags, mx):
        idx = max([i for i, t in enumerate(q) if t in tags], default=-1)
        if idx < 0: return None
        n = len(q) - 1 - idx
        del q[:idx + 1]
        assert n <= mx, n
        return n
    vmwait = lambda tags: qwait(vm, tags, 63)
    lgwait = lambda tags: qwait(lq, tags, 15)
    def tagsof(tok):
        if tok == "L": return [("P",)]
        q, _, part = tok[1:].partition(".")
        return [("X", int(q), int(c)) for c in (part or "0123")]
    g0 = sum([tagsof(t) for t in o.g0.split(",") if t], [])
    n = vmwait([("W", 0)] + g0)
    if n is not None: A(f"s_waitcnt vmcnt({n})")
    A("s_barrier")
    stamp(2)

    mf, pos, touched = [], {}, set()
    def add(oo, T, c, k, breg, xtag):
        mf.append((acc(oo, T), wreg(wslot(om(c)), k, T), breg, [xtag, ("w", om(c), k, T)], (oo, T) not in touched))
        touched.add((oo, T))
    def p1x(r): return xr(1, r & 7)
    for t in range(N1):
        for oo in range(16):
            for ti, T in enumerate((0, 1) if oo % 2 == 0 else (1, 0)):
                for k in ((0, 1, 2) if ti == 0 else (2, 1, 0)):
                    r = oo + k - 1
                    if 0 <= r <= 15: add(oo, T, t, k, p1x(r), ("x", t, r))
            pos[("o", 16 * t + oo)] = len(mf) - 1
    chains, T = [], 0
    NB = 4 if o.outord else 2
    NW = NL + 1 + fown
    def yr(s_, l):
        b = s_ % NB
        return xr(b, l) if b < 2 and not (o.outord and b == 1) else xr(1, l) if (b == 2 and o.outord) else 256 + 24 * NW + (b // 2) * NL * 4 + l * 4
    if o.outord:
        for n_, oo in enumerate(list(range(14)) + ([15, 14] if o.swapend else [14, 15])):
            for ti, T in enumerate((0, 1) if n_ % 2 == 0 else (1, 0)):
                chains += [(oo + k - 1, k, T) for k in ((0, 1, 2) if ti == 0 else (2, 1, 0)) if 0 <= oo + k - 1 <= 15]
    else:
        for s in range(14):
            for k in (2, 1, 0):
                if 0 <= s + 1 - k <= 15: chains += [(s, k, T), (s, k, 1 - T)]; T = 1 - T
        chains += [(14, 2, T), (14, 2, 1 - T)]
        for g1, g2 in (((14, 1), (15, 2)), ((14, 0), (15, 1))):
            chains += [g1 + (T,), g2 + (T,), g1 + (1 - T,), g2 + (1 - T,)] if o.tend else [g1 + (T,), g1 + (1 - T,), g2 + (1 - T,), g2 + (T,)]
    done = {}
    for n_, (s, k, T) in enumerate(chains):
        pos.setdefault(("s", s + 1 - k if o.outord else s), len(mf))
        for l in (range(NL) if n_ % 2 == 0 else range(NL - 1, -1, -1)): add(s + 1 - k, T, N1 + l, k, yr(s, l), ("y", s, l))
        done[(s + 1 - k, T)] = len(mf) - 1
    NM = len(mf)
    assert NM == 1472
    firstuse, lastuse = {}, {}
    for i, m in enumerate(mf):
        for tg in m[3]: firstuse.setdefault(tg, i); lastuse[tg] = i
    bp = kv(o.bpos)
    H = {h: pos[("o", bp.get(h, 16 * (h // 2) + (o.b1 if h % 2 else o.b0)))] for h in HS}
    Q = [pos[("s", int(s))] + o.b2 for s in o.qs.split(",")]
    allb = [H[h] for h in HS] + Q
    assert allb == sorted(allb)
    nxt = lambda g: min(b for b in allb if b > g)
    wtags = lambda w: [("w", w, k, T) for k in range(3) for T in range(2)]
    def xtags(q):
        if q < N1: return [("x", t, r) for t in (q & ~1, q | 1) for r in range(8 * (q & 1), 8 * (q & 1) + 8)]
        return [("y", s, l) for s in (2 * (q - N1), 2 * (q - N1) + 1) for l in range(NL)]
    land, issue_at, prev = {}, {}, {}
    early = set(x.partition("@")[0].partition(".")[0] for x in (pre + "," + post).split(","))
    hof = {c: h for h, c in hs.items()}
    for w in range(16): land[("W", w)] = -1 if w == 0 else H[hof[SEQ[w]]]
    for w in range(16):
        if w >= 4: issue_at[f"w{w}"] = nxt(land[("W", w - 4)]); prev[f"w{w}"] = wtags(w - 4)
        elif f"w{w}" not in early: issue_at[f"w{w}"] = allb[0]; prev[f"w{w}"] = []
    xl = kv(o.xl)
    for q in range(NU):
        for i in range(4): land[("X", q, i)] = -1 if q == 0 else H[2 * q - 2] if q <= N1 else Q[xl[q - N1]]
    land[("P",)] = H[o.pland]
    for t in g0: land[t] = -1
    E = []
    for x in filter(None, o.eb.split(",")):
        g, _, toks = x.partition(":")
        E.append(int(g))
        for t in filter(None, toks.split("+")):
            for tg in tagsof(t): land[tg] = int(g)
    for q in range(3, N1): issue_at[f"x{q}"] = H[2 * (q - 3)]; prev[f"x{q}"] = xtags(q - 4) if q >= 4 else []
    xi = kv(o.xi)
    for p in range(8):
        q = N1 + p
        if q in XPREV:
            pq = XPREV[q]
            g = H[2 * pq + 2] if 2 * pq + 2 in H else Q[0] if pq <= N1 else None
            prev[f"x{q}"] = xtags(pq)
        else:
            ws = [w for w in range(12, 16) if WB + (w % 4) * 24576 < XBASE[q] + 2 * JS and XBASE[q] < WB + (w % 4 + 1) * 24576]
            g = max(nxt(land[("W", w)]) for w in ws)
            prev[f"x{q}"] = sum([wtags(w) for w in ws], [])
        issue_at[f"x{q}"] = max(g, allb[len(HS) + xi[p]] if p in xi else g)
    ptags = [("p", i) for i in range(4)]
    prel = issue_at["x3"] = nxt(land[("P",)]); prev["x3"] = ptags
    bars = {g: ([t for t, b in land.items() if b == g], sum([prev[k] for k, b in issue_at.items() if b == g], [])) for g in allb + E}
    dmas = []
    for tok in filter(None, post.split(",")):
        for op in items(tok): op.earliest = -1; dmas.append(op)
    for g in allb:
        for k in sorted([k for k, b in issue_at.items() if b == g], key=lambda k: land[("W", int(k[1:])) if k[0] == "w" else ("X", int(k[1:]), 0)]):
            for op in items(k): op.earliest = g; dmas.append(op)
        if o.otouch >= 0 and g == H[o.otouch]:
            for op in items("O"): op.earliest = g; dmas.append(op)
    reads = []
    def rd_x(tag, dst, q, off, kk, e):
        b = XBASE[q]
        v, b = ((vXa, vXb)[kk], b) if b < WB else ((vXa2, vXb2)[kk], b - B2) if b < B3 else ((vXa3, vXb3)[kk], b - B3)
        reads.append(Op("r", f"ds_read_b128 {r4(dst)}, v{v} offset:{b + off}", tag, max(e, land[("X", q, off // 2048)])))
    for w in range(16):
        for k in (1, 2, 0):
            for T in (0, 1):
                for h in (0, 1):
                    r = wreg(wslot(w), k, T) + 2 * h
                    reads.append(Op("t", f"ds_read_b64_tr_b16 a[{r}:{r+1}], v{vW + T + (2 if w % 4 >= 2 else 0)} offset:{(w%2)*24576 + k*8192 + h*4096}",
                                    ("w", w, k, T), land[("W", w)]))
    for t in range(N1):
        for r in range(16):
            e = max(lastuse.get(("x", t, r - 8) if r >= 8 else ("x", t - 1, r + 8), -1), firstuse[("x", t, r)] - o.xlead)
            rd_x(("x", t, r), p1x(r), (t & ~1) + (r >> 3), (r & 7) * 1024, t & 1, e)
    for s in range(16):
        for l in range(NL):
            e = max(firstuse[("y", s, l)] - o.ylead, lastuse.get(("y", s - NB, l), -1))
            if xr(1, 0) <= yr(s, l) < 256: e = max(e, lastuse[("x", N1 - 1, 8 + l)])
            rd_x(("y", s, l), yr(s, l), N1 + (s >> 1), (s & 1) * 1024 + (l >> 1) * 2048, l & 1, e)
    for i in range(4):
        reads.append(Op("r", f"ds_read_b128 v[{16+4*i}:{19+4*i}], v{vPl} offset:{PL + i * 256}", ("p", i), land[("P",)]))
        firstuse[("p", i)] = NM
    dl = dict(firstuse)
    for g, (_, tl) in bars.items():
        for tg in tl: dl[tg] = min(dl[tg], g + 1 - o.hoist)
    reads.sort(key=lambda r: (dl[r.tag], r.earliest))
    valu, stores = [], []
    def V(txt, e, cost=1, kind="v", need=None, dep=(), grp=0, pk=None):
        valu.append(Op(kind, txt, None, e, need, cost, dep=dep, grp=grp, pk=pk)); return valu[-1]
    last = None
    def P(txt, cost=1):
        nonlocal last
        last = V(txt, prel, cost, dep=[last] if last else [], grp=-1)
    for e in range(8):
        d = e >> 1; b = PTMP + (e % 2) * 4
        for j, src in enumerate((20, 24, 16, 28)):
            P(f"v_and_b32 v{b+j}, 0xffff0000, v{src+d}" if e & 1 else f"v_lshlrev_b32 v{b+j}, 16, v{src+d}")
        P(f"v_add_f32 v{b}, 0x3727c5ac, v{b}")
        P(f"v_sqrt_f32 v{b}, v{b}", 2)
        P(f"v_rcp_f32 v{b}, v{b}", 2)
        P(f"v_mul_f32 v{b+2}, s34, v{b+2}")
        P(f"v_mul_f32 v{b}, v{b+1}, v{b}")
        P(f"v_mul_f32 v{b+3}, s34, v{b+3}")
        P(f"v_mul_f32 v{PS+e}, s34, v{b}")
        P(f"v_fma_f32 v{PT+e}, -v{b+2}, v{b}, v{b+3}")
    for n_, oo in enumerate(sorted(range(16), key=lambda oo: max(done[(oo, 0)], done[(oo, 1)]))):
        te = TE + (n_ % 2) * 8; ob = acc(oo, 0) + 2
        cv = []
        for T in sorted((0, 1), key=lambda T: done[(oo, T)]):
            e0 = done[(oo, T)] + 2
            a = acc(oo, T); tt = te + T * 4; c = T * 4
            pr = lambda x: f"v[{x}:{x+1}]"
            z = [V(f"v_fma_f32 v{a+r}, v{a+r}, v{PS+c+r}, v{PT+c+r}", e0, need=done[(oo, T)], grp=n_,
                   pk=f"v_pk_fma_f32 {pr(a+r)}, {pr(a+r)}, {pr(PS+c+r)}, {pr(PT+c+r)}" if r % 2 == 0 else None) for r in range(4)]
            x = [V(f"v_exp_f32 v{tt+r}, {'' if o.neg else '-'}v{a+r}", e0, 2, dep=[z[r]], grp=n_) for r in range(4)]
            d = [V(f"v_fma_f32 v{tt+r}, v{tt+r}, s34, s34", e0, dep=[x[r]], grp=n_,
                   pk=f"v_pk_fma_f32 {pr(tt+r)}, {pr(tt+r)}, s[34:35], s[34:35]" if r % 2 == 0 else None) for r in range(4)]
            q = [V(f"v_rcp_f32 v{tt+r}, v{tt+r}", e0, 2, dep=[d[r]], grp=n_) for r in range(4)]
            m = [V(f"v_mul_f32 v{a+r}, v{a+r}, v{tt+r}", e0, dep=[q[r]], grp=n_,
                   pk=f"v_pk_mul_f32 {pr(a+r)}, {pr(a+r)}, {pr(tt+r)}" if r % 2 == 0 else None) for r in range(4)]
            for p in ((1, 0) if T == 0 else (0, 1)):
                cv.append(V(f"v_cvt_pk_bf16_f32 v{ob+T*2+p}, v{a+2*p}, v{a+2*p+1}", e0, dep=m[2*p:2*p+2] + cv[-1:] * (len(cv) % 2), grp=n_))
        if not o.nostore:
            stores.append(Op("st", f"buffer_store_dwordx4 v[{ob}:{ob+3}], v{vOut}, s[{sO}:{sO+3}], {['0','s36','s37','s38'][oo//4]} offen offset:{(oo%4)*1024} {o.stflag}", dep=cv, grp=n_))
    first = sorted([r for r in reads if r.tag[:2] == ("w", 0)], key=lambda r: firstuse[r.tag])
    fx = [r for r in reads if r.tag in (("x", 0, 0), ("x", 0, 1), ("x", 0, 2))]
    for op in fx[:1] + first[:2] + fx[1:2] + first[2:8] + fx[2:] + first[8:]:
        A(op.text); lq.append(op.tag); reads.remove(op)
    at = {}
    def rdy(v, i):
        if v.earliest > i or (v.need is not None and len(L) - at[v.need] - 1 < 8): return False
        return all(d.at is not None and len(L) - d.at - 1 >= (0 if v.grp < 0 and d.cost == 1 else 1) for d in v.dep)
    def pick(i, room, kind="v"):
        g0_ = valu[0].grp if valu else 0
        for v in valu:
            if v.grp > g0_ + (1 if o.look else 0): break
            if v.kind == kind and v.cost <= room and rdy(v, i): return v
            if not o.look: break
        return None
    def put(v): v.at = len(L); A(v.text); valu.remove(v)
    A(f"s_waitcnt lgkmcnt({lgwait(mf[0][3])})")
    hops = kv(o.hop)
    di = over = 0; staged = False; lastdma = -10; firststore = None; lastst = -100
    for i in range(NM):
        if i == pos[("s", 0)]: stamp(3)
        at[i] = len(L)
        D, a, b, needs, fst = mf[i]
        if not o.nomfma: A(f"v_mfma_f32_16x16x32_bf16 v[{D}:{D+3}], a[{a}:{a+3}], {r4(b)}, {'0' if fst else f'v[{D}:{D+3}]'}")
        if i in hops: walk(hops[i])
        slot = 1
        if i in bars:
            A("s_barrier"); slot += 1 + o.barpad
            if o.traj: tstamp()
        j = i + o.hoist
        if j in bars:
            if not o.hoist: L.pop(-2 if o.traj else -1)
            assert not [r.tag for r in reads if r.tag in bars[j][1]], (j, [r.tag for r in reads if r.tag in bars[j][1]])
            assert not [d.tag for d in dmas[di:] if d.tag in bars[j][0]], (j, "load not issued before its barrier", [d.tag for d in dmas[di:] if d.tag in bars[j][0]])
            nv, nl = vmwait(bars[j][0]), lgwait(bars[j][1] + (mf[i + 1][3] if o.hoist else []))
            w = " ".join(x for x in (f"vmcnt({nv})" if nv is not None else "", f"lgkmcnt({nl})" if nl is not None else "") if x)
            ts = L.pop() if o.traj and not o.hoist else None
            if w: A("s_waitcnt " + w); slot += 1
            if not o.hoist: A("s_barrier")
            if ts: L.append(ts)
        if i + 1 < NM:
            assert not [r.tag for r in reads if r.tag in mf[i + 1][3]], (i, mf[i + 1][3])
            nl = lgwait(mf[i + 1][3])
            if nl is not None: A(f"s_waitcnt lgkmcnt({nl})"); slot += 1
        if not staged and di < len(dmas) and dmas[di].earliest <= i and not salu_needed(dmas[di].sal): staged = True
        sp = (o.dspace0 if dmas[di].earliest < 0 else o.dspace if i < H[o.dlate] else o.dspace2) / 10 if di < len(dmas) else 0
        if staged and slot == 1 and i >= lastdma + sp:
            lastdma = lastdma + sp if i < lastdma + sp + 1.5 else i
            issue(dmas[di]); di += 1; staged = False
            continue
        if stores and slot == 1 and di == len(dmas) and i >= pos[("s", 0)] + o.st0 and i >= lastst + o.stsp and rdy(stores[0], i):
            A(stores.pop(0).text); vm.append(("S",)); lastst = i
            if firststore is None: firststore = i
            continue
        rd = next((r for r in reads if r.earliest <= i), None)
        if not staged and di < len(dmas) and dmas[di].earliest <= i:
            need = salu_needed(dmas[di].sal)
            vr = pick(i, 2)
            room = 3 if not (rd or vr) else 2 if not (rd and vr) and not (vr and vr.cost == 2) else 1
            while need and slot <= room: emit_salu(need.pop(0)); slot += 1
            if not need: staged = True
        slot = max(slot, 2)
        if rd and slot <= 3 and len(lq) < 15:
            A(rd.text); lq.append(rd.tag); reads.remove(rd); slot += 1
            if dl[rd.tag] - i < o.warn: print(f"; WARN late read {rd.tag} gap {i} deadline {dl[rd.tag]}", file=sys.stderr)
        while slot < 4:
            v = pick(i, 4 - slot)
            if not v: break
            put(v); slot += v.cost
        over += max(0, slot - 4)
    assert not reads and di == len(dmas)
    print(f"; leftover VALU {len(valu)} (cost {sum(v.cost for v in valu)}), overflow {over}, first store {firststore}, bars {allb}", file=sys.stderr)
    stamp(4)
    print(f"; stores left {len(stores)}; last load issued at gap {lastdma}", file=sys.stderr)
    i = 0
    while i < len(valu):
        v = valu[i]
        while stores and all(d.at is not None for d in stores[0].dep): A(stores.pop(0).text)
        if v.need is not None and not o.nomfma:
            gap = 8 - (len(L) - at[v.need] - 1)
            if gap > 0: A(f"s_nop {gap - 1}"); at[v.need] -= 8
        two = v.pk and i + 1 < len(valu) and valu[i + 1].text.split()[0] == v.text.split()[0] and not valu[i + 1].pk and o.pk
        if any(d.at == len(L) - 1 and d.cost == 2 for d in v.dep + (valu[i + 1].dep if two else [])): A("s_nop 0")
        v.at = len(L)
        if two: valu[i + 1].at = len(L); A(v.pk); i += 2
        else: A(v.text); i += 1
    for st in stores: A(st.text)
    pad(5)
    if o.stamps:
        A("s_waitcnt vmcnt(0)")
        stamp(5)
        A("s_cmp_lg_u32 s3, 0")
        A("s_cbranch_scc1 L_end")
        for s in ("s_mov_b32 s20, s74", "s_and_b32 s21, s75, 0xffff", "s_mov_b32 s22, 0x100000", "s_waitcnt lgkmcnt(0)",
                  "s_lshl_b32 s33, s2, 7", "v_mov_b32 v6, 0"): A(s)
        for i in range(tn[0]):
            A(f"v_mov_b32 v12, s{TR[i]}")
            A(f"buffer_store_dword v12, v6, s[20:23], s33 offen offset:{4*i}")
        for i in range(0 if o.traj else 6):
            base = 40 + 4 * i if i < 3 else 80 + 4 * (i - 3)
            for jx in range(4): A(f"v_mov_b32 v{12+jx}, s{base+jx}")
            A(f"buffer_store_dwordx4 v[12:15], v6, s[20:23], s33 offen offset:{16*i}")
            A("s_nop 1")
    L.append("L_end:")
    A("s_endpgm")
    A(".fill 2048, 4, 0xbf810000")
    if o.abl:
        i0 = next(i for i, x in enumerate(L) if "v_mfma" in x) + 200
        drop = {"x": "ds_read_b128", "w": "ds_read_b64_tr", "e": ("v_exp", "v_rcp"), "v": ("v_exp", "v_rcp", "v_fma", "v_mul", "v_cvt"), "d": "buffer_load_dwordx4", "s": "buffer_store_dwordx4 v[1", "t": "buffer_store_dwordx4 v[2"}
        pre_ = tuple(sum([[drop[c]] if isinstance(drop[c], str) else list(drop[c]) for c in o.abl], []))
        L = [x for i, x in enumerate(L) if i < i0 or not x.strip().startswith(pre_) or "s[20:23]" in x]
    if not o.nomfma and not o.abl: check_hazards(L)
    if NST: L = insert_stubs(L, NST, o.ioff)
    return HEADER + f"; @launch grid=(256,1,1) block=(256,1,1) lds={LDS}\n" + \
        '.amdgcn_target "amdgcn-amd-amdhsa--gfx950"\n.text\n' + \
        f".globl {KN}\n.p2align 12\n.type {KN},@function\n" + "\n".join(L) + "\n" + \
        f""".section .rodata,"a"
.p2align 6
.amdhsa_kernel {KN}
  .amdhsa_next_free_vgpr {256 + 24 * NW + (8 * NL if o.outord else 0)}
  .amdhsa_next_free_sgpr 102
  .amdhsa_accum_offset 256
  .amdhsa_group_segment_fixed_size 0
  .amdhsa_kernarg_size 72
  .amdhsa_user_sgpr_count 2
  .amdhsa_user_sgpr_kernarg_segment_ptr 1
  .amdhsa_system_sgpr_workgroup_id_x 1
  .amdhsa_float_denorm_mode_32 3
.end_amdhsa_kernel
"""

def insert_stubs(L, n, base):
    import subprocess, tempfile
    txt = '.amdgcn_target "amdgcn-amd-amdhsa--gfx950"\n.text\n' + "\n".join(L) + "\n" + "".join(f"L_stub{k}:\n" for k in range(n))
    d = tempfile.mkdtemp()
    open(d + "/a.s", "w").write(txt)
    subprocess.check_call(["clang", "-x", "assembler", "-target", "amdgcn-amd-amdhsa", "-mcpu=gfx950", "-c", d + "/a.s", "-o", d + "/a.o"])
    dis = subprocess.check_output(["llvm-objdump", "-d", "--mcpu=gfx950", d + "/a.o"], text=True)
    addrs = [int(m.group(1), 16) for m in re.finditer(r"// ([0-9A-F]{12}):", dis)]
    amap = dict(zip([i for i, x in enumerate(L) if x.startswith("    ") and not x.strip().startswith(".")], addrs))
    out, k = [], 0
    for i, x in enumerate(L):
        if k < n and i in amap and base + amap[i] + 4 * k >= (base // 0x1000 + 1 + k) * 0x1000:
            out.append(f"L_stub{k}:"); out.append(f"    s_cbranch_vccnz L_back{k // 4}"); k += 1
        out.append(x)
    assert k == n, k
    return out

if __name__ == "__main__":
    ap = argparse.ArgumentParser()
    ap.add_argument("out")
    for f in ("traj", "stamps", "nomfma", "nodma", "nostore"): ap.add_argument("--" + f, action="store_true")
    for k, v in dict(abl="", hop="", pad="", stflag="sc1 nt", porder="w0,x0.01,I,x0.23,S,A,x1,L,w1.01,B|w1.2345,x2,w2", g0="x0.01",
                     eb="8:x0.23,32:x1.01,56:x1.23+L", bpos="0:12", fh="5,7,9,11,13,15", place="r,r,0,1,2,3,4,5", qs="0,4",
                     xi="", xl="1:0,2:0,3:0,4:1,5:1,6:1,7:1").items(): ap.add_argument("--" + k, default=v)
    for k, v in dict(hoist=1, neg=1, pland=0, swapend=1, barpad=0, st0=200, stsp=20, dlate=14, otouch=-1, n1=10, nst=6, ioff=0x2300, b0=5, b1=11, b2=4, xlead=16, ylead=30, dspace=58, dspace0=40, dspace2=70,
                     warn=8, holdst=1, look=1, pk=1, tend=1, outord=1).items(): ap.add_argument("--" + k, type=int, default=v)
    o = ap.parse_args()
    open(o.out, "w").write(gen(o))
```

```python
import sys, argparse, re
from hazard import check_hazards

KN = "standalone__batchnorm__sampling_kernel"
HEADER = """; conv1d(K=3) as MFMA GEMM + folded BatchNorm + SiLU.  Generated by tools/gen4.py (hand-written generator).
; x and w reach LDS by buffer_load ... lds (rings of 4 x 16 KB and 4 x 24 KB), published by vmcnt + s_barrier.
"""
WB = 65536
WB2 = WB + 8192
LDS = WB + 4 * 24576
PL = 3 * 16384
sX, sW, sO, sP = 8, 12, 16, 20
vXa, vXb, vW = 1, 2, 3
vDW, vDX, vOut, vPar = 7, 8, 10, 11
vXa2, vXb2, vXa3, vXb3 = 12, 13, 14, 15
TE, OB = 16, 32
vPl, vDump, vI = 37, 38, 39
PS, PT, PTMP = 40, 48, 56
XR, ACC = 64, 128
def acc(o, T): return ACC + (o * 2 + T) * 4
def wreg(slot, k, T): return slot * 24 + (k * 2 + T) * 4
def xr(b, l): return XR + b * 32 + l * 4
def r4(x): return f"v[{x}:{x+3}]" if x < 256 else f"a[{x-256}:{x-253}]"
def kv(s): return dict((int(a), int(b)) for a, b in (x.split(":") for x in s.split(",") if x))

class Op:
    def __init__(self, kind, text, tag=None, earliest=0, need=None, cost=1, sal=(), dep=(), grp=0, pk=None):
        self.kind, self.text, self.tag, self.earliest, self.need, self.cost = kind, text, tag, earliest, need, cost
        self.sal, self.dep, self.grp, self.pk, self.at = list(sal), list(dep), grp, pk, None

def gen(o):
    N1 = o.n1; NL = 16 - N1; NU = N1 + 8
    fh = [int(x) for x in o.fh.split(",")]
    fown = fh[-1] < 2 * N1 - 2
    assert len(fh) == NL
    hs = {2 * t: t + 1 for t in range(N1 - 1)}
    for l, h in enumerate(fh): assert h not in hs; hs[h] = N1 + l
    SEQ = [0] + [hs[h] for h in sorted(hs)]
    HS = sorted(set(hs) | {2 * N1 - 2})
    om = SEQ.index
    def wslot(w): c = SEQ[w]; return c % 2 if c < N1 else 0 if c == 15 and not fown else c - N1 + 2
    place = o.place.split(",")
    JS = 8192 if NL == 8 else NL * 1024
    WPOS = [WB2, WB + 24576, WB + 49152] if NL == 8 else [WB + 2 * JS * j for j in range(8)]
    XBASE = {q: (q % 4) * 16384 for q in range(N1)}
    XPREV, nr = {}, N1
    for p, w in enumerate(place):
        if w == "r": XBASE[N1 + p] = (nr % 4) * 16384; XPREV[N1 + p] = max(q for q in range(N1 + p) if XBASE.get(q) == XBASE[N1 + p]); nr += 1
        else: XBASE[N1 + p] = WPOS[int(w)]
    B2 = WPOS[0]; B3 = B2 + 61440
    L = []
    A = lambda s: L.append("    " + s)
    def pad(i):
        if o.pad and int(o.pad.split(":")[0]) == i:
            n = int(float(o.pad.split(":")[1]) * 100)
            if i == 5: A("s_waitcnt vmcnt(0)")
            L.append(f"L_pad{i}:")
            for s in ("s_sleep 1", "s_memrealtime s[96:97]", "s_waitcnt lgkmcnt(0)", "s_sub_u32 s96, s96, s98",
                      f"s_cmp_lt_u32 s96, {n}", f"s_cbranch_scc1 L_pad{i}"): A(s)
    TR = list(range(40, 52, 2)) + list(range(80, 102, 2)) + [64, 66, 68, 70, 28, 30, 72, 24, 26, 62]
    tn = [0]
    def tstamp(): A(f"s_memtime s[{TR[tn[0]]}:{TR[tn[0]]+1}]"); tn[0] += 1
    def stamp(i):
        if o.pad and i == 0: A("s_memrealtime s[98:99]")
        if i != 5: pad(i)
        if o.traj:
            if i in (0, 2, 4, 5): tstamp()
        elif o.stamps:
            A(f"s_memtime s[{40+2*i}:{41+2*i}]")
            A(f"s_memrealtime s[{80+2*i}:{81+2*i}]")
    L.append(KN + ":")
    stamp(0)
    A("s_load_dwordx4 s[28:31], s[0:1], 0")
    A("s_load_dwordx8 s[64:71], s[0:1], 16")
    A("s_load_dwordx2 s[72:73], s[0:1], 48")
    if o.stamps: A("s_load_dwordx2 s[74:75], s[0:1], 64")
    A("s_cmp_ge_u32 s2, 256")
    A("s_cbranch_scc1 L_end")
    A("v_lshrrev_b32 v56, 6, v0")
    A("v_and_b32 v0, 63, v0")
    A("v_readfirstlane_b32 s3, v56")
    A("s_and_b32 s4, s2, 7")
    A("s_lshr_b32 s5, s2, 3")
    A("s_and_b32 s6, s5, 3")
    A("s_lshr_b32 s33, s5, 2")
    A("s_lshl_b32 s7, s4, 3")
    A("s_add_u32 s7, s7, s33")
    A("s_lshl_b32 s7, s7, 18")
    A("s_lshl_b32 s6, s6, 8")
    A("s_lshl_b32 s59, s4, 16")
    A("s_lshl_b32 s58, s4, 7")
    A("v_lshrrev_b32 v56, 4, v0")
    A("v_and_b32 v57, 15, v0")
    A("v_and_b32 v58, 1, v56")
    A("v_lshlrev_b32 v58, 2, v58")
    A("v_or_b32 v58, s3, v58")
    A("v_lshlrev_b32 v58, 1, v58")
    A("v_xor_b32 v58, v58, v57")
    A("v_lshlrev_b32 v58, 4, v58")
    A("v_lshl_add_u32 v58, v56, 13, v58")
    A("s_lshl_b32 s33, s3, 10")
    A("s_add_u32 s34, s33, s6")
    A(f"v_add_u32 v{vDW}, s34, v58")
    A(f"s_add_u32 s60, s33, {WB}")
    A("s_and_b32 s35, s3, 1")
    A("s_lshr_b32 s36, s3, 1")
    A("v_lshrrev_b32 v59, 3, v0")
    A("v_and_b32 v60, 7, v0")
    A("v_lshrrev_b32 v61, 1, v59")
    A("s_lshl_b32 s37, s35, 2")
    A("v_add_u32 v61, s37, v61")
    A("v_xor_b32 v61, v61, v60")
    A("v_lshlrev_b32 v61, 4, v61")
    A("v_lshl_add_u32 v61, v59, 14, v61")
    A("s_lshl_b32 s37, s35, 17")
    A("s_add_u32 s37, s37, s7")
    A("s_lshl_b32 s38, s36, 10")
    A("s_add_u32 s39, s37, s38")
    A(f"v_add_u32 v{vDX}, s39, v61")
    A("s_lshl_b32 s61, s35, 13")
    A("s_add_u32 s61, s61, s38")
    A(f"s_mov_b32 s{sX+2}, 0x1000000")
    A(f"s_mov_b32 s{sX+3}, 0x20000")
    A(f"s_mov_b32 s{sW+2}, 0x180000")
    A(f"s_mov_b32 s{sW+3}, 0x20000")
    A("s_getpc_b64 s[56:57]")
    A("s_lshl_b32 s39, s5, 2")
    A("s_add_u32 s39, s39, s3")
    A("s_lshl_b32 s39, s39, 8")
    A(f"v_and_b32 v{vI}, 1, v0")
    A(f"v_lshl_add_u32 v{vI}, v{vI}, 7, s39")
    def setup1():
        A(f"s_mov_b32 s32, {B2}")
        A("v_lshrrev_b32 v58, 1, v57")
        A("v_xor_b32 v58, v58, v56")
        A("v_lshlrev_b32 v58, 4, v58")
        A("v_and_b32 v59, 7, v57")
        A("v_lshl_add_u32 v58, v59, 7, v58")
        A("v_lshrrev_b32 v59, 3, v57")
        A(f"v_lshl_add_u32 v{vXa}, v59, 13, v58")
        A(f"v_xor_b32 v{vXb}, 64, v{vXa}")
        A(f"v_mul_u32_u24 v59, {JS}, v59")
        A(f"v_add3_u32 v{vXa2}, v59, v58, s32")
        A(f"v_xor_b32 v{vXb2}, 64, v{vXa2}")
        A(f"v_add_u32 v{vXa3}, 61440, v{vXa2}")
        A(f"v_add_u32 v{vXb3}, 61440, v{vXb2}")
        A(f"s_mul_i32 s32, s35, {JS}")
        A("s_add_u32 s32, s32, s38")
        A("v_lshrrev_b32 v58, 2, v57")
        A("v_and_b32 v59, 3, v0")
        A("v_and_b32 v62, 1, v56")
        A("v_lshl_add_u32 v62, v62, 2, v58")
        A("v_lshlrev_b32 v62, 1, v62")
        A("s_lshl_b32 s34, s3, 2")
        A("v_add_u32 v63, s34, v59")
        A("v_xor_b32 v63, v63, v62")
        A("v_lshlrev_b32 v63, 4, v63")
        A("v_lshl_add_u32 v63, v58, 10, v63")
        A("v_lshl_add_u32 v63, v56, 8, v63")
        A(f"v_add_u32 v{vW}, {WB}, v63")
        A(f"v_xor_b32 v{vW+1}, 8, v{vW}")
        A(f"v_add_u32 v{vW+2}, 49152, v{vW}")
        A(f"v_add_u32 v{vW+3}, 49152, v{vW+1}")
        A("s_lshl_b32 s33, s3, 6")
        A(f"v_lshl_add_u32 v{vPl}, v56, 4, s33")
        A("s_add_u32 s33, s6, s7")
        A(f"v_lshl_add_u32 v58, v57, 14, v{vPl}")
        A(f"v_add_u32 v{vOut}, s33, v58")
        A(f"s_mov_b32 s{sO+2}, 0x1000000")
        A(f"s_mov_b32 s{sO+3}, 0x20000")
        A(f"s_mov_b32 s34, {'0xbfb8aa3b' if o.neg else '0x3fb8aa3b'}")
        A("s_mov_b32 s35, s34")
        A("s_mov_b32 s36, 4096")
        A("s_mov_b32 s37, 8192")
        A("s_mov_b32 s38, 12288")
        A(f"s_mov_b32 s{sP+2}, 1024")
        A(f"s_mov_b32 s{sP+3}, 0x20000")
        A(f"v_lshlrev_b32 v{vPar}, 2, v0")
        A("s_lshl_b32 s39, s3, 8")
    if o.early: setup1()
    A("s_waitcnt lgkmcnt(0)")
    stamp(1)
    A(f"s_mov_b32 s{sX}, s28")
    A(f"s_and_b32 s{sX+1}, s29, 0xffff")
    A(f"s_mov_b32 s{sW}, s30")
    A(f"s_and_b32 s{sW+1}, s31, 0xffff")

    vm, lq = [], []
    tmpi = [0]
    def stmp(): tmpi[0] += 1; return 52 + tmpi[0] % 4
    def items(tok):
        r = []
        n, _, part = tok[1:].partition(".")
        if tok[0] == "w":
            w = int(n)
            for grp in ([int(c) for c in part] if part else range(6)):
                st = stmp()
                r.append(Op("d", f"buffer_load_dwordx4 v{vDW}, s[{sW}:{sW+3}], s{st} offen lds", ("W", w),
                            sal=[f"s_add_u32 m0, s60, {(w % 4) * 24576 + grp * 4096}",
                                 f"s_xor_b32 s{st}, s59, {SEQ[w] * 32768 + (grp // 2) * 524288 + (grp % 2) * 4096}"]))
        elif tok[0] == "x":
            q = int(n)
            for i in ([int(c) for c in part] if part else range(4 if q < N1 else NL // 2)):
                if q >= N1 or i % 2 == 0 or not r: st = stmp()
                if q < N1:
                    r.append(Op("d", f"buffer_load_dwordx4 v{vDX}, s[{sX}:{sX+3}], s{st} offen offset:{(i&1)*2048} nt lds", ("X", q, i),
                                sal=[f"s_add_u32 m0, s61, {XBASE[q] + (i >> 1) * 4096}", f"s_xor_b32 s{st}, s58, {(q >> 1) * 128 + (q & 1) * 8192 + (i >> 1) * 4096}"]))
                else:
                    r.append(Op("d", f"buffer_load_dwordx4 v{vDX}, s[{sX}:{sX+3}], s{st} offen nt lds", ("X", q, i),
                                sal=[f"s_add_u32 m0, s{61 if XBASE[q] < WB else 32}, {XBASE[q] + i * 2048}", f"s_xor_b32 s{st}, s58, {(q - N1) * 2048 + (N1 // 2 + i) * 128}"]))
        elif tok == "I":
            r.append(Op("d", f"global_load_dword v{vDump}, v{vI}, s[56:57]", ("F",)))
        elif tok == "O":
            r.append(Op("d", f"buffer_load_dword v{vDump}, off, s[{sO}:{sO+3}], s7 nt", ("F",)))
        elif tok == "L":
            r.append(Op("d", f"buffer_load_dword v{vPar}, s[{sP}:{sP+3}], s6 offen lds", ("P",), sal=[f"s_add_u32 m0, s39, {PL}"]))
        return r
    have = {}
    def salu_needed(sal): return [s for s in sal if have.get(s.split()[1]) != s]
    def emit_salu(s): A(s); have[s.split()[1]] = s
    def issue(op):
        if o.nodma and "lds" in op.text: return
        A(op.text); vm.append(op.tag)
    NST = o.nst
    def walk(rnd):
        if not NST: return
        A("s_mov_b64 vcc, 1")
        for k in range(4 * rnd, min(NST, 4 * rnd + 4)):
            A(f"s_cmp_eq_u32 s3, {k - 4 * rnd}")
            A(f"s_cbranch_scc1 L_stub{k}")
        L.append(f"L_back{rnd}:")
        A("s_mov_b64 vcc, 0")
    def setup():
        if not o.early: setup1()
        A(f"s_mov_b32 s{sO}, s72")
        A(f"s_and_b32 s{sO+1}, s73, 0xffff")
        for i in range(1, 4):
            A(f"s_cmp_eq_u32 s3, {i}")
            A(f"s_cselect_b64 s[64:65], s[{64+2*i}:{65+2*i}], s[64:65]")
        A(f"s_mov_b32 s{sP}, s64")
        A(f"s_and_b32 s{sP+1}, s65, 0xffff")
    pre, _, post = o.porder.partition("|")
    for tok in filter(None, pre.split(",")):
        if tok == "S": setup()
        elif tok in "ABC": walk("ABC".index(tok))
        else:
            for op in items(tok):
                for s in salu_needed(op.sal): emit_salu(s)
                if L[-1].split()[1].startswith("m0"): A("s_nop 0")
                issue(op)
    def qwait(q, tags, mx):
        idx = max([i for i, t in enumerate(q) if t in tags], default=-1)
        if idx < 0: return None
        n = len(q) - 1 - idx
        del q[:idx + 1]
        assert n <= mx, n
        return n
    vmwait = lambda tags: qwait(vm, tags, 63)
    lgwait = lambda tags: qwait(lq, tags, 15)
    def tagsof(tok):
        if tok == "L": return [("P",)]
        q, _, part = tok[1:].partition(".")
        return [("X", int(q), int(c)) for c in (part or "0123")]
    g0 = sum([tagsof(t) for t in o.g0.split(",") if t], [])
    n = vmwait([("W", 0)] + g0)
    if n is not None: A(f"s_waitcnt vmcnt({n})")
    A("s_barrier")
    stamp(2)

    mf, pos, touched = [], {}, set()
    def add(oo, T, c, k, breg, xtag):
        mf.append((acc(oo, T), wreg(wslot(om(c)), k, T), breg, [xtag, ("w", om(c), k, T)], (oo, T) not in touched))
        touched.add((oo, T))
    def p1x(r): return xr(1, r & 7)
    for t in range(N1):
        for oo in range(16):
            for ti, T in enumerate((0, 1) if oo % 2 == 0 else (1, 0)):
                for k in ((0, 1, 2) if ti == 0 else (2, 1, 0)):
                    r = oo + k - 1
                    if 0 <= r <= 15: add(oo, T, t, k, p1x(r), ("x", t, r))
            pos[("o", 16 * t + oo)] = len(mf) - 1
    chains, T = [], 0
    NB = 4 if o.outord else 2
    NW = NL + 1 + fown
    def yr(s_, l):
        b = s_ % NB
        return xr(b, l) if b < 2 and not (o.outord and b == 1) else xr(1, l) if (b == 2 and o.outord) else 256 + 24 * NW + (b // 2) * NL * 4 + l * 4
    if o.outord:
        for n_, oo in enumerate(list(range(14)) + ([15, 14] if o.swapend else [14, 15])):
            for ti, T in enumerate((0, 1) if n_ % 2 == 0 else (1, 0)):
                chains += [(oo + k - 1, k, T) for k in ((0, 1, 2) if ti == 0 else (2, 1, 0)) if 0 <= oo + k - 1 <= 15]
    else:
        for s in range(14):
            for k in (2, 1, 0):
                if 0 <= s + 1 - k <= 15: chains += [(s, k, T), (s, k, 1 - T)]; T = 1 - T
        chains += [(14, 2, T), (14, 2, 1 - T)]
        for g1, g2 in (((14, 1), (15, 2)), ((14, 0), (15, 1))):
            chains += [g1 + (T,), g2 + (T,), g1 + (1 - T,), g2 + (1 - T,)] if o.tend else [g1 + (T,), g1 + (1 - T,), g2 + (1 - T,), g2 + (T,)]
    done = {}
    for n_, (s, k, T) in enumerate(chains):
        pos.setdefault(("s", s + 1 - k if o.outord else s), len(mf))
        for l in (range(NL) if n_ % 2 == 0 else range(NL - 1, -1, -1)): add(s + 1 - k, T, N1 + l, k, yr(s, l), ("y", s, l))
        done[(s + 1 - k, T)] = len(mf) - 1
    NM = len(mf)
    assert NM == 1472
    firstuse, lastuse = {}, {}
    for i, m in enumerate(mf):
        for tg in m[3]: firstuse.setdefault(tg, i); lastuse[tg] = i
    bp = kv(o.bpos)
    H = {h: pos[("o", bp.get(h, 16 * (h // 2) + (o.b1 if h % 2 else o.b0)))] for h in HS}
    Q = [pos[("s", int(s))] + o.b2 for s in o.qs.split(",")]
    allb = [H[h] for h in HS] + Q
    assert allb == sorted(allb)
    nxt = lambda g: min(b for b in allb if b > g)
    wtags = lambda w: [("w", w, k, T) for k in range(3) for T in range(2)]
    def xtags(q):
        if q < N1: return [("x", t, r) for t in (q & ~1, q | 1) for r in range(8 * (q & 1), 8 * (q & 1) + 8)]
        return [("y", s, l) for s in (2 * (q - N1), 2 * (q - N1) + 1) for l in range(NL)]
    land, issue_at, prev = {}, {}, {}
    early = set(x.partition("@")[0].partition(".")[0] for x in (pre + "," + post).split(","))
    hof = {c: h for h, c in hs.items()}
    for w in range(16): land[("W", w)] = -1 if w == 0 else H[hof[SEQ[w]]]
    for w in range(16):
        if w >= 4: issue_at[f"w{w}"] = nxt(land[("W", w - 4)]); prev[f"w{w}"] = wtags(w - 4)
        elif f"w{w}" not in early: issue_at[f"w{w}"] = allb[0]; prev[f"w{w}"] = []
    xl = kv(o.xl)
    for q in range(NU):
        for i in range(4): land[("X", q, i)] = -1 if q == 0 else H[2 * q - 2] if q <= N1 else Q[xl[q - N1]]
    land[("P",)] = H[o.pland]
    for t in g0: land[t] = -1
    E = []
    for x in filter(None, o.eb.split(",")):
        g, _, toks = x.partition(":")
        E.append(int(g))
        for t in filter(None, toks.split("+")):
            for tg in tagsof(t): land[tg] = int(g)
    for q in range(3, N1): issue_at[f"x{q}"] = H[2 * (q - 3)]; prev[f"x{q}"] = xtags(q - 4) if q >= 4 else []
    xi = kv(o.xi)
    for p in range(8):
        q = N1 + p
        if q in XPREV:
            pq = XPREV[q]
            g = H[2 * pq + 2] if 2 * pq + 2 in H else Q[0] if pq <= N1 else None
            prev[f"x{q}"] = xtags(pq)
        else:
            ws = [w for w in range(12, 16) if WB + (w % 4) * 24576 < XBASE[q] + 2 * JS and XBASE[q] < WB + (w % 4 + 1) * 24576]
            g = max(nxt(land[("W", w)]) for w in ws)
            prev[f"x{q}"] = sum([wtags(w) for w in ws], [])
        issue_at[f"x{q}"] = max(g, allb[len(HS) + xi[p]] if p in xi else g)
    ptags = [("p", i) for i in range(4)]
    prel = issue_at["x3"] = nxt(land[("P",)]); prev["x3"] = ptags
    bars = {g: ([t for t, b in land.items() if b == g], sum([prev[k] for k, b in issue_at.items() if b == g], [])) for g in allb + E}
    dmas = []
    for tok in filter(None, post.split(",")):
        for op in items(tok): op.earliest = -1; dmas.append(op)
    for g in allb:
        for k in sorted([k for k, b in issue_at.items() if b == g], key=lambda k: land[("W", int(k[1:])) if k[0] == "w" else ("X", int(k[1:]), 0)]):
            for op in items(k): op.earliest = g; dmas.append(op)
        if o.otouch >= 0 and g == H[o.otouch]:
            for op in items("O"): op.earliest = g; dmas.append(op)
    reads = []
    def rd_x(tag, dst, q, off, kk, e):
        b = XBASE[q]
        v, b = ((vXa, vXb)[kk], b) if b < WB else ((vXa2, vXb2)[kk], b - B2) if b < B3 else ((vXa3, vXb3)[kk], b - B3)
        reads.append(Op("r", f"ds_read_b128 {r4(dst)}, v{v} offset:{b + off}", tag, max(e, land[("X", q, off // 2048)])))
    for w in range(16):
        for k in (1, 2, 0):
            for T in (0, 1):
                for h in (0, 1):
                    r = wreg(wslot(w), k, T) + 2 * h
                    reads.append(Op("t", f"ds_read_b64_tr_b16 a[{r}:{r+1}], v{vW + T + (2 if w % 4 >= 2 else 0)} offset:{(w%2)*24576 + k*8192 + h*4096}",
                                    ("w", w, k, T), land[("W", w)]))
    for t in range(N1):
        for r in range(16):
            e = max(lastuse.get(("x", t, r - 8) if r >= 8 else ("x", t - 1, r + 8), -1), firstuse[("x", t, r)] - o.xlead)
            rd_x(("x", t, r), p1x(r), (t & ~1) + (r >> 3), (r & 7) * 1024, t & 1, e)
    for s in range(16):
        for l in range(NL):
            e = max(firstuse[("y", s, l)] - o.ylead, lastuse.get(("y", s - NB, l), -1))
            if xr(1, 0) <= yr(s, l) < 256: e = max(e, lastuse[("x", N1 - 1, 8 + l)])
            rd_x(("y", s, l), yr(s, l), N1 + (s >> 1), (s & 1) * 1024 + (l >> 1) * 2048, l & 1, e)
    for i in range(4):
        reads.append(Op("r", f"ds_read_b128 v[{16+4*i}:{19+4*i}], v{vPl} offset:{PL + i * 256}", ("p", i), land[("P",)]))
        firstuse[("p", i)] = NM
    dl = dict(firstuse)
    for g, (_, tl) in bars.items():
        for tg in tl: dl[tg] = min(dl[tg], g + 1 - o.hoist)
    reads.sort(key=lambda r: (dl[r.tag], r.earliest))
    valu, stores = [], []
    def V(txt, e, cost=1, kind="v", need=None, dep=(), grp=0, pk=None):
        valu.append(Op(kind, txt, None, e, need, cost, dep=dep, grp=grp, pk=pk)); return valu[-1]
    last = None
    def P(txt, cost=1):
        nonlocal last
        last = V(txt, prel, cost, dep=[last] if last else [], grp=-1)
    for e in range(8):
        d = e >> 1; b = PTMP + (e % 2) * 4
        for j, src in enumerate((20, 24, 16, 28)):
            P(f"v_and_b32 v{b+j}, 0xffff0000, v{src+d}" if e & 1 else f"v_lshlrev_b32 v{b+j}, 16, v{src+d}")
        P(f"v_add_f32 v{b}, 0x3727c5ac, v{b}")
        P(f"v_sqrt_f32 v{b}, v{b}", 2)
        P(f"v_rcp_f32 v{b}, v{b}", 2)
        P(f"v_mul_f32 v{b+2}, s34, v{b+2}")
        P(f"v_mul_f32 v{b}, v{b+1}, v{b}")
        P(f"v_mul_f32 v{b+3}, s34, v{b+3}")
        P(f"v_mul_f32 v{PS+e}, s34, v{b}")
        P(f"v_fma_f32 v{PT+e}, -v{b+2}, v{b}, v{b+3}")
    for n_, oo in enumerate(sorted(range(16), key=lambda oo: max(done[(oo, 0)], done[(oo, 1)]))):
        te = TE + (n_ % 2) * 8; ob = acc(oo, 0) + 2
        cv = []
        for T in sorted((0, 1), key=lambda T: done[(oo, T)]):
            e0 = done[(oo, T)] + 2
            a = acc(oo, T); tt = te + T * 4; c = T * 4
            pr = lambda x: f"v[{x}:{x+1}]"
            z = [V(f"v_fma_f32 v{a+r}, v{a+r}, v{PS+c+r}, v{PT+c+r}", e0, need=done[(oo, T)], grp=n_,
                   pk=f"v_pk_fma_f32 {pr(a+r)}, {pr(a+r)}, {pr(PS+c+r)}, {pr(PT+c+r)}" if r % 2 == 0 else None) for r in range(4)]
            x = [V(f"v_exp_f32 v{tt+r}, {'' if o.neg else '-'}v{a+r}", e0, 2, dep=[z[r]], grp=n_) for r in range(4)]
            d = [V(f"v_fma_f32 v{tt+r}, v{tt+r}, s34, s34", e0, dep=[x[r]], grp=n_,
                   pk=f"v_pk_fma_f32 {pr(tt+r)}, {pr(tt+r)}, s[34:35], s[34:35]" if r % 2 == 0 else None) for r in range(4)]
            q = [V(f"v_rcp_f32 v{tt+r}, v{tt+r}", e0, 2, dep=[d[r]], grp=n_) for r in range(4)]
            m = [V(f"v_mul_f32 v{a+r}, v{a+r}, v{tt+r}", e0, dep=[q[r]], grp=n_,
                   pk=f"v_pk_mul_f32 {pr(a+r)}, {pr(a+r)}, {pr(tt+r)}" if r % 2 == 0 else None) for r in range(4)]
            for p in ((1, 0) if T == 0 else (0, 1)):
                cv.append(V(f"v_cvt_pk_bf16_f32 v{ob+T*2+p}, v{a+2*p}, v{a+2*p+1}", e0, dep=m[2*p:2*p+2] + cv[-1:] * (len(cv) % 2), grp=n_))
        if not o.nostore:
            stores.append(Op("st", f"buffer_store_dwordx4 v[{ob}:{ob+3}], v{vOut}, s[{sO}:{sO+3}], {['0','s36','s37','s38'][oo//4]} offen offset:{(oo%4)*1024} {o.stflag}", dep=cv, grp=n_))
    first = sorted([r for r in reads if r.tag[:2] == ("w", 0)], key=lambda r: firstuse[r.tag])
    fx = [r for r in reads if r.tag in (("x", 0, 0), ("x", 0, 1), ("x", 0, 2))]
    for op in fx[:1] + first[:2] + fx[1:2] + first[2:8] + fx[2:] + first[8:]:
        A(op.text); lq.append(op.tag); reads.remove(op)
    at = {}
    def rdy(v, i):
        if v.earliest > i or (v.need is not None and len(L) - at[v.need] - 1 < 8): return False
        return all(d.at is not None and len(L) - d.at - 1 >= (0 if v.grp < 0 and d.cost == 1 else 1) for d in v.dep)
    def pick(i, room, kind="v"):
        g0_ = valu[0].grp if valu else 0
        for v in valu:
            if v.grp > g0_ + (1 if o.look else 0): break
            if v.kind == kind and v.cost <= room and rdy(v, i): return v
            if not o.look: break
        return None
    def put(v): v.at = len(L); A(v.text); valu.remove(v)
    A(f"s_waitcnt lgkmcnt({lgwait(mf[0][3])})")
    hops = kv(o.hop)
    di = over = 0; staged = False; lastdma = -10; firststore = None; lastst = -100
    for i in range(NM):
        if i == pos[("s", 0)]: stamp(3)
        at[i] = len(L)
        D, a, b, needs, fst = mf[i]
        if not o.nomfma: A(f"v_mfma_f32_16x16x32_bf16 v[{D}:{D+3}], a[{a}:{a+3}], {r4(b)}, {'0' if fst else f'v[{D}:{D+3}]'}")
        if i in hops: walk(hops[i])
        slot = 1
        if i in bars:
            A("s_barrier"); slot += 1 + o.barpad
            if o.traj: tstamp()
        j = i + o.hoist
        if j in bars:
            if not o.hoist: L.pop(-2 if o.traj else -1)
            assert not [r.tag for r in reads if r.tag in bars[j][1]], (j, [r.tag for r in reads if r.tag in bars[j][1]])
            assert not [d.tag for d in dmas[di:] if d.tag in bars[j][0]], (j, "load not issued before its barrier", [d.tag for d in dmas[di:] if d.tag in bars[j][0]])
            nv, nl = vmwait(bars[j][0]), lgwait(bars[j][1] + (mf[i + 1][3] if o.hoist else []))
            w = " ".join(x for x in (f"vmcnt({nv})" if nv is not None else "", f"lgkmcnt({nl})" if nl is not None else "") if x)
            ts = L.pop() if o.traj and not o.hoist else None
            if w: A("s_waitcnt " + w); slot += 1
            if not o.hoist: A("s_barrier")
            if ts: L.append(ts)
        if i + 1 < NM:
            assert not [r.tag for r in reads if r.tag in mf[i + 1][3]], (i, mf[i + 1][3])
            nl = lgwait(mf[i + 1][3])
            if nl is not None: A(f"s_waitcnt lgkmcnt({nl})"); slot += 1
        if not staged and di < len(dmas) and dmas[di].earliest <= i and not salu_needed(dmas[di].sal): staged = True
        sp = (o.dspace0 if dmas[di].earliest < 0 else o.dspace if i < H[o.dlate] else o.dspace2) / 10 if di < len(dmas) else 0
        if staged and slot == 1 and i >= lastdma + sp:
            lastdma = lastdma + sp if i < lastdma + sp + 1.5 else i
            issue(dmas[di]); di += 1; staged = False
            continue
        if stores and slot == 1 and di == len(dmas) and i >= pos[("s", 0)] + o.st0 and i >= lastst + o.stsp and rdy(stores[0], i):
            A(stores.pop(0).text); vm.append(("S",)); lastst = i
            if firststore is None: firststore = i
            continue
        rd = next((r for r in reads if r.earliest <= i), None)
        if not staged and di < len(dmas) and dmas[di].earliest <= i:
            need = salu_needed(dmas[di].sal)
            vr = pick(i, 2)
            room = 3 if not (rd or vr) else 2 if not (rd and vr) and not (vr and vr.cost == 2) else 1
            while need and slot <= room: emit_salu(need.pop(0)); slot += 1
            if not need: staged = True
        slot = max(slot, 2)
        if rd and slot <= 3 and len(lq) < 15:
            A(rd.text); lq.append(rd.tag); reads.remove(rd); slot += 1
            if dl[rd.tag] - i < o.warn: print(f"; WARN late read {rd.tag} gap {i} deadline {dl[rd.tag]}", file=sys.stderr)
        while slot < 4:
            v = pick(i, 4 - slot)
            if not v: break
            put(v); slot += v.cost
        over += max(0, slot - 4)
    assert not reads and di == len(dmas)
    print(f"; leftover VALU {len(valu)} (cost {sum(v.cost for v in valu)}), overflow {over}, first store {firststore}, bars {allb}", file=sys.stderr)
    stamp(4)
    print(f"; stores left {len(stores)}; last load issued at gap {lastdma}", file=sys.stderr)
    i = 0
    while i < len(valu):
        v = valu[i]
        while stores and all(d.at is not None for d in stores[0].dep): A(stores.pop(0).text)
        if v.need is not None and not o.nomfma:
            gap = 8 - (len(L) - at[v.need] - 1)
            if gap > 0: A(f"s_nop {gap - 1}"); at[v.need] -= 8
        two = v.pk and i + 1 < len(valu) and valu[i + 1].text.split()[0] == v.text.split()[0] and not valu[i + 1].pk and o.pk
        if any(d.at == len(L) - 1 and d.cost == 2 for d in v.dep + (valu[i + 1].dep if two else [])): A("s_nop 0")
        v.at = len(L)
        if two: valu[i + 1].at = len(L); A(v.pk); i += 2
        else: A(v.text); i += 1
    for st in stores: A(st.text)
    pad(5)
    if o.stamps:
        A("s_waitcnt vmcnt(0)")
        stamp(5)
        A("s_cmp_lg_u32 s3, 0")
        A("s_cbranch_scc1 L_end")
        for s in ("s_mov_b32 s20, s74", "s_and_b32 s21, s75, 0xffff", "s_mov_b32 s22, 0x100000", "s_waitcnt lgkmcnt(0)",
                  "s_lshl_b32 s33, s2, 7", "v_mov_b32 v6, 0"): A(s)
        for i in range(tn[0]):
            A(f"v_mov_b32 v12, s{TR[i]}")
            A(f"buffer_store_dword v12, v6, s[20:23], s33 offen offset:{4*i}")
        for i in range(0 if o.traj else 6):
            base = 40 + 4 * i if i < 3 else 80 + 4 * (i - 3)
            for jx in range(4): A(f"v_mov_b32 v{12+jx}, s{base+jx}")
            A(f"buffer_store_dwordx4 v[12:15], v6, s[20:23], s33 offen offset:{16*i}")
            A("s_nop 1")
    L.append("L_end:")
    A("s_endpgm")
    A(".fill 2048, 4, 0xbf810000")
    if o.abl:
        i0 = next(i for i, x in enumerate(L) if "v_mfma" in x) + 200
        drop = {"x": "ds_read_b128", "w": "ds_read_b64_tr", "e": ("v_exp", "v_rcp"), "v": ("v_exp", "v_rcp", "v_fma", "v_mul", "v_cvt"), "d": "buffer_load_dwordx4", "s": "buffer_store_dwordx4 v[1", "t": "buffer_store_dwordx4 v[2"}
        pre_ = tuple(sum([[drop[c]] if isinstance(drop[c], str) else list(drop[c]) for c in o.abl], []))
        L = [x for i, x in enumerate(L) if i < i0 or not x.strip().startswith(pre_) or "s[20:23]" in x]
    if not o.nomfma and not o.abl: check_hazards(L)
    if NST: L = insert_stubs(L, NST, o.ioff)
    return HEADER + f"; @launch grid=(256,1,1) block=(256,1,1) lds={LDS}\n" + \
        '.amdgcn_target "amdgcn-amd-amdhsa--gfx950"\n.text\n' + \
        f".globl {KN}\n.p2align 12\n.p2align 8\n.type {KN},@function\n" + "\n".join(L) + "\n" + \
        f""".section .rodata,"a"
.p2align 6
.amdhsa_kernel {KN}
  .amdhsa_next_free_vgpr {256 + 24 * NW + (8 * NL if o.outord else 0)}
  .amdhsa_next_free_sgpr 102
  .amdhsa_accum_offset 256
  .amdhsa_group_segment_fixed_size 0
  .amdhsa_kernarg_size 72
  .amdhsa_user_sgpr_count 2
  .amdhsa_user_sgpr_kernarg_segment_ptr 1
  .amdhsa_system_sgpr_workgroup_id_x 1
  .amdhsa_float_denorm_mode_32 3
.end_amdhsa_kernel
"""

def insert_stubs(L, n, base):
    import subprocess, tempfile
    txt = '.amdgcn_target "amdgcn-amd-amdhsa--gfx950"\n.text\n' + "\n".join(L) + "\n" + "".join(f"L_stub{k}:\n" for k in range(n))
    d = tempfile.mkdtemp()
    open(d + "/a.s", "w").write(txt)
    subprocess.check_call(["clang", "-x", "assembler", "-target", "amdgcn-amd-amdhsa", "-mcpu=gfx950", "-c", d + "/a.s", "-o", d + "/a.o"])
    dis = subprocess.check_output(["llvm-objdump", "-d", "--mcpu=gfx950", d + "/a.o"], text=True)
    addrs = [int(m.group(1), 16) for m in re.finditer(r"// ([0-9A-F]{12}):", dis)]
    amap = dict(zip([i for i, x in enumerate(L) if x.startswith("    ") and not x.strip().startswith(".")], addrs))
    out, k = [], 0
    for i, x in enumerate(L):
        if k < n and i in amap and base + amap[i] + 4 * k >= (base // 0x1000 + 1 + k) * 0x1000:
            out.append(f"L_stub{k}:"); out.append(f"    s_cbranch_vccnz L_back{k // 4}"); k += 1
        out.append(x)
    assert k == n, k
    return out

if __name__ == "__main__":
    ap = argparse.ArgumentParser()
    ap.add_argument("out")
    for f in ("traj", "stamps", "nomfma", "nodma", "nostore"): ap.add_argument("--" + f, action="store_true")
    for k, v in dict(abl="", hop="", pad="", stflag="sc1 nt", porder="w0,x0.01,I,x0.23,S,A,x1,L,w1.01,B|w1.2345,x2,w2", g0="x0.01",
                     eb="8:x0.23,32:x1.01,56:x1.23+L", bpos="0:12", fh="5,7,9,11,13,15", place="r,r,0,1,2,3,4,5", qs="0,4",
                     xi="", xl="1:0,2:0,3:0,4:1,5:1,6:1,7:1").items(): ap.add_argument("--" + k, default=v)
    for k, v in dict(early=1, hoist=1, neg=1, pland=0, swapend=1, barpad=0, st0=200, stsp=20, dlate=14, otouch=-1, n1=10, nst=6, ioff=0x2300, b0=5, b1=11, b2=4, xlead=16, ylead=30, dspace=58, dspace0=40, dspace2=70,
                     warn=8, holdst=1, look=1, pk=1, tend=1, outord=1).items(): ap.add_argument("--" + k, type=int, default=v)
    o = ap.parse_args()
    open(o.out, "w").write(gen(o))
```

```python
import sys, argparse, re
from hazard import check_hazards

KN = "standalone__batchnorm__sampling_kernel"
HEADER = """; conv1d(K=3) as MFMA GEMM + folded BatchNorm + SiLU.  Generated by tools/gen4.py (hand-written generator).
; x and w reach LDS by buffer_load ... lds (rings of 4 x 16 KB and 4 x 24 KB), published by vmcnt + s_barrier.
"""
WB = 65536
WB2 = WB + 8192
LDS = WB + 4 * 24576
PL = 3 * 16384
sX, sW, sO, sP = 8, 12, 16, 20
vXa, vXb, vW = 1, 2, 3
vDW, vDX, vOut, vPar = 7, 8, 10, 11
vXa2, vXb2, vXa3, vXb3 = 12, 13, 14, 15
TE, OB = 16, 32
vPl, vDump, vI = 37, 38, 39
PS, PT, PTMP = 40, 48, 56
XR, ACC = 64, 128
def acc(o, T): return ACC + (o * 2 + T) * 4
def wreg(slot, k, T): return slot * 24 + (k * 2 + T) * 4
def xr(b, l): return XR + b * 32 + l * 4
def r4(x): return f"v[{x}:{x+3}]" if x < 256 else f"a[{x-256}:{x-253}]"
def kv(s): return dict((int(a), int(b)) for a, b in (x.split(":") for x in s.split(",") if x))

class Op:
    def __init__(self, kind, text, tag=None, earliest=0, need=None, cost=1, sal=(), dep=(), grp=0, pk=None):
        self.kind, self.text, self.tag, self.earliest, self.need, self.cost = kind, text, tag, earliest, need, cost
        self.sal, self.dep, self.grp, self.pk, self.at = list(sal), list(dep), grp, pk, None

def gen(o):
    N1 = o.n1; NL = 16 - N1; NU = N1 + 8
    fh = [int(x) for x in o.fh.split(",")]
    fown = fh[-1] < 2 * N1 - 2
    assert len(fh) == NL
    hs = {2 * t: t + 1 for t in range(N1 - 1)}
    for l, h in enumerate(fh): assert h not in hs; hs[h] = N1 + l
    SEQ = [0] + [hs[h] for h in sorted(hs)]
    HS = sorted(set(hs) | {2 * N1 - 2})
    om = SEQ.index
    def wslot(w): c = SEQ[w]; return c % 2 if c < N1 else 0 if c == 15 and not fown else c - N1 + 2
    place = o.place.split(",")
    JS = 8192 if NL == 8 else NL * 1024
    WPOS = [WB2, WB + 24576, WB + 49152] if NL == 8 else [WB + 2 * JS * j for j in range(8)]
    XBASE = {q: (q % 4) * 16384 for q in range(N1)}
    XPREV, nr = {}, N1
    for p, w in enumerate(place):
        if w == "r": XBASE[N1 + p] = (nr % 4) * 16384; XPREV[N1 + p] = max(q for q in range(N1 + p) if XBASE.get(q) == XBASE[N1 + p]); nr += 1
        else: XBASE[N1 + p] = WPOS[int(w)]
    B2 = WPOS[0]; B3 = B2 + 61440
    L = []
    A = lambda s: L.append("    " + s)
    def pad(i):
        if o.pad and int(o.pad.split(":")[0]) == i:
            n = int(float(o.pad.split(":")[1]) * 100)
            if i == 5: A("s_waitcnt vmcnt(0)")
            L.append(f"L_pad{i}:")
            for s in ("s_sleep 1", "s_memrealtime s[96:97]", "s_waitcnt lgkmcnt(0)", "s_sub_u32 s96, s96, s98",
                      f"s_cmp_lt_u32 s96, {n}", f"s_cbranch_scc1 L_pad{i}"): A(s)
    TR = list(range(40, 52, 2)) + list(range(80, 102, 2)) + [64, 66, 68, 70, 28, 30, 72, 24, 26, 62]
    tn = [0]
    def tstamp(): A(f"s_memtime s[{TR[tn[0]]}:{TR[tn[0]]+1}]"); tn[0] += 1
    def stamp(i):
        if o.pad and i == 0: A("s_memrealtime s[98:99]")
        if i != 5: pad(i)
        if o.traj:
            if i in (0, 2, 4, 5): tstamp()
        elif o.stamps:
            A(f"s_memtime s[{40+2*i}:{41+2*i}]")
            A(f"s_memrealtime s[{80+2*i}:{81+2*i}]")
    L.append(KN + ":")
    stamp(0)
    A("s_load_dwordx4 s[28:31], s[0:1], 0")
    A("s_load_dwordx8 s[64:71], s[0:1], 16")
    A("s_load_dwordx2 s[72:73], s[0:1], 48")
    if o.stamps: A("s_load_dwordx2 s[74:75], s[0:1], 64")
    A("s_cmp_ge_u32 s2, 256")
    A("s_cbranch_scc1 L_end")
    A("v_lshrrev_b32 v56, 6, v0")
    A("v_and_b32 v0, 63, v0")
    A("v_readfirstlane_b32 s3, v56")
    A("s_and_b32 s4, s2, 7")
    A("s_lshr_b32 s5, s2, 3")
    A("s_and_b32 s6, s5, 3")
    A("s_lshr_b32 s33, s5, 2")
    A("s_lshl_b32 s7, s4, 3")
    A("s_add_u32 s7, s7, s33")
    A("s_lshl_b32 s7, s7, 18")
    A("s_lshl_b32 s6, s6, 8")
    if o.rot == 1:
        A("s_lshl_b32 s59, s4, 16")
        A("s_lshl_b32 s58, s4, 7")
    else:
        if o.rot == 3:
            A("s_and_b32 s33, s4, 6")
            A("s_add_u32 s4, s4, s33")
        A("s_lshl_b32 s59, s4, 15")
        A("s_lshr_b32 s58, s4, 1")
        A("s_lshl_b32 s58, s58, 7")
    A("v_lshrrev_b32 v56, 4, v0")
    A("v_and_b32 v57, 15, v0")
    A("v_and_b32 v58, 1, v56")
    A("v_lshlrev_b32 v58, 2, v58")
    A("v_or_b32 v58, s3, v58")
    A("v_lshlrev_b32 v58, 1, v58")
    A("v_xor_b32 v58, v58, v57")
    A("v_lshlrev_b32 v58, 4, v58")
    A("v_lshl_add_u32 v58, v56, 13, v58")
    A("s_lshl_b32 s33, s3, 10")
    A("s_add_u32 s34, s33, s6")
    A(f"v_add_u32 v{vDW}, s34, v58")
    A(f"s_add_u32 s60, s33, {WB}")
    A("s_and_b32 s35, s3, 1")
    A("s_lshr_b32 s36, s3, 1")
    A("v_lshrrev_b32 v59, 3, v0")
    A("v_and_b32 v60, 7, v0")
    A("v_lshrrev_b32 v61, 1, v59")
    A("s_lshl_b32 s37, s35, 2")
    A("v_add_u32 v61, s37, v61")
    A("v_xor_b32 v61, v61, v60")
    A("v_lshlrev_b32 v61, 4, v61")
    A("v_lshl_add_u32 v61, v59, 14, v61")
    A("s_lshl_b32 s37, s35, 17")
    A("s_add_u32 s37, s37, s7")
    A("s_lshl_b32 s38, s36, 10")
    A("s_add_u32 s39, s37, s38")
    A(f"v_add_u32 v{vDX}, s39, v61")
    A("s_lshl_b32 s61, s35, 13")
    A("s_add_u32 s61, s61, s38")
    A(f"s_mov_b32 s{sX+2}, 0x1000000")
    A(f"s_mov_b32 s{sX+3}, 0x20000")
    A(f"s_mov_b32 s{sW+2}, 0x180000")
    A(f"s_mov_b32 s{sW+3}, 0x20000")
    A("s_getpc_b64 s[56:57]")
    A("s_lshl_b32 s39, s5, 2")
    A("s_add_u32 s39, s39, s3")
    A("s_lshl_b32 s39, s39, 8")
    A(f"v_and_b32 v{vI}, 1, v0")
    A(f"v_lshl_add_u32 v{vI}, v{vI}, 7, s39")
    def setup1():
        A(f"s_mov_b32 s32, {B2}")
        A("v_lshrrev_b32 v58, 1, v57")
        A("v_xor_b32 v58, v58, v56")
        if o.rot != 1:
            A("s_and_b32 s33, s4, 1")
            A("s_lshl_b32 s33, s33, 2")
            A("v_xor_b32 v58, s33, v58")
        A("v_lshlrev_b32 v58, 4, v58")
        A("v_and_b32 v59, 7, v57")
        A("v_lshl_add_u32 v58, v59, 7, v58")
        A("v_lshrrev_b32 v59, 3, v57")
        A(f"v_lshl_add_u32 v{vXa}, v59, 13, v58")
        A(f"v_xor_b32 v{vXb}, 64, v{vXa}")
        A(f"v_mul_u32_u24 v59, {JS}, v59")
        A(f"v_add3_u32 v{vXa2}, v59, v58, s32")
        A(f"v_xor_b32 v{vXb2}, 64, v{vXa2}")
        A(f"v_add_u32 v{vXa3}, 61440, v{vXa2}")
        A(f"v_add_u32 v{vXb3}, 61440, v{vXb2}")
        A(f"s_mul_i32 s32, s35, {JS}")
        A("s_add_u32 s32, s32, s38")
        A("v_lshrrev_b32 v58, 2, v57")
        A("v_and_b32 v59, 3, v0")
        A("v_and_b32 v62, 1, v56")
        A("v_lshl_add_u32 v62, v62, 2, v58")
        A("v_lshlrev_b32 v62, 1, v62")
        A("s_lshl_b32 s34, s3, 2")
        A("v_add_u32 v63, s34, v59")
        A("v_xor_b32 v63, v63, v62")
        A("v_lshlrev_b32 v63, 4, v63")
        A("v_lshl_add_u32 v63, v58, 10, v63")
        A("v_lshl_add_u32 v63, v56, 8, v63")
        A(f"v_add_u32 v{vW}, {WB}, v63")
        A(f"v_xor_b32 v{vW+1}, 8, v{vW}")
        A(f"v_add_u32 v{vW+2}, 49152, v{vW}")
        A(f"v_add_u32 v{vW+3}, 49152, v{vW+1}")
        A("s_lshl_b32 s33, s3, 6")
        A(f"v_lshl_add_u32 v{vPl}, v56, 4, s33")
        A("s_add_u32 s33, s6, s7")
        A(f"v_lshl_add_u32 v58, v57, 14, v{vPl}")
        A(f"v_add_u32 v{vOut}, s33, v58")
        A(f"s_mov_b32 s{sO+2}, 0x1000000")
        A(f"s_mov_b32 s{sO+3}, 0x20000")
        A(f"s_mov_b32 s34, {'0xbfb8aa3b' if o.neg else '0x3fb8aa3b'}")
        A("s_mov_b32 s35, s34")
        A("s_mov_b32 s36, 4096")
        A("s_mov_b32 s37, 8192")
        A("s_mov_b32 s38, 12288")
        A(f"s_mov_b32 s{sP+2}, 1024")
        A(f"s_mov_b32 s{sP+3}, 0x20000")
        A(f"v_lshlrev_b32 v{vPar}, 2, v0")
        A("s_lshl_b32 s39, s3, 8")
    if o.early: setup1()
    A("s_waitcnt lgkmcnt(0)")
    stamp(1)
    A(f"s_mov_b32 s{sX}, s28")
    A(f"s_and_b32 s{sX+1}, s29, 0xffff")
    A(f"s_mov_b32 s{sW}, s30")
    A(f"s_and_b32 s{sW+1}, s31, 0xffff")

    vm, lq = [], []
    tmpi = [0]
    def stmp(): tmpi[0] += 1; return 52 + tmpi[0] % 4
    def items(tok):
        r = []
        n, _, part = tok[1:].partition(".")
        if tok[0] == "w":
            w = int(n)
            for grp in ([int(c) for c in part] if part else range(6)):
                st = stmp()
                r.append(Op("d", f"buffer_load_dwordx4 v{vDW}, s[{sW}:{sW+3}], s{st} offen lds", ("W", w),
                            sal=[f"s_add_u32 m0, s60, {(w % 4) * 24576 + grp * 4096}",
                                 f"s_xor_b32 s{st}, s59, {SEQ[w] * 32768 + (grp // 2) * 524288 + (grp % 2) * 4096}"]))
        elif tok[0] == "x":
            q = int(n)
            for i in ([int(c) for c in part] if part else range(4 if q < N1 else NL // 2)):
                if q >= N1 or i % 2 == 0 or not r: st = stmp()
                if q < N1:
                    r.append(Op("d", f"buffer_load_dwordx4 v{vDX}, s[{sX}:{sX+3}], s{st} offen offset:{(i&1)*2048} nt lds", ("X", q, i),
                                sal=[f"s_add_u32 m0, s61, {XBASE[q] + (i >> 1) * 4096}", f"s_xor_b32 s{st}, s58, {(q >> 1) * 128 + (q & 1) * 8192 + (i >> 1) * 4096}"]))
                else:
                    r.append(Op("d", f"buffer_load_dwordx4 v{vDX}, s[{sX}:{sX+3}], s{st} offen nt lds", ("X", q, i),
                                sal=[f"s_add_u32 m0, s{61 if XBASE[q] < WB else 32}, {XBASE[q] + i * 2048}", f"s_xor_b32 s{st}, s58, {(q - N1) * 2048 + (N1 // 2 + i) * 128}"]))
        elif tok == "I":
            r.append(Op("d", f"global_load_dword v{vDump}, v{vI}, s[56:57]", ("F",)))
        elif tok == "O":
            r.append(Op("d", f"buffer_load_dword v{vDump}, off, s[{sO}:{sO+3}], s7 nt", ("F",)))
        elif tok == "L":
            r.append(Op("d", f"buffer_load_dword v{vPar}, s[{sP}:{sP+3}], s6 offen lds", ("P",), sal=[f"s_add_u32 m0, s39, {PL}"]))
        return r
    have = {}
    def salu_needed(sal): return [s for s in sal if have.get(s.split()[1]) != s]
    def emit_salu(s): A(s); have[s.split()[1]] = s
    def issue(op):
        if o.nodma and "lds" in op.text: return
        A(op.text); vm.append(op.tag)
    NST = o.nst
    def walk(rnd):
        if not NST: return
        A("s_mov_b64 vcc, 1")
        for k in range(4 * rnd, min(NST, 4 * rnd + 4)):
            A(f"s_cmp_eq_u32 s3, {k - 4 * rnd}")
            A(f"s_cbranch_scc1 L_stub{k}")
        L.append(f"L_back{rnd}:")
        A("s_mov_b64 vcc, 0")
    def setup():
        if not o.early: setup1()
        A(f"s_mov_b32 s{sO}, s72")
        A(f"s_and_b32 s{sO+1}, s73, 0xffff")
        for i in range(1, 4):
            A(f"s_cmp_eq_u32 s3, {i}")
            A(f"s_cselect_b64 s[64:65], s[{64+2*i}:{65+2*i}], s[64:65]")
        A(f"s_mov_b32 s{sP}, s64")
        A(f"s_and_b32 s{sP+1}, s65, 0xffff")
    pre, _, post = o.porder.partition("|")
    for tok in filter(None, pre.split(",")):
        if tok == "S": setup()
        elif tok in "ABC": walk("ABC".index(tok))
        else:
            for op in items(tok):
                for s in salu_needed(op.sal): emit_salu(s)
                if L[-1].split()[1].startswith("m0"): A("s_nop 0")
                issue(op)
    def qwait(q, tags, mx):
        idx = max([i for i, t in enumerate(q) if t in tags], default=-1)
        if idx < 0: return None
        n = len(q) - 1 - idx
        del q[:idx + 1]
        assert n <= mx, n
        return n
    vmwait = lambda tags: qwait(vm, tags, 63)
    lgwait = lambda tags: qwait(lq, tags, 15)
    def tagsof(tok):
        if tok == "L": return [("P",)]
        q, _, part = tok[1:].partition(".")
        return [("X", int(q), int(c)) for c in (part or "0123")]
    g0 = sum([tagsof(t) for t in o.g0.split(",") if t], [])
    n = vmwait([("W", 0)] + g0)
    if n is not None: A(f"s_waitcnt vmcnt({n})")
    A("s_barrier")
    stamp(2)

    mf, pos, touched = [], {}, set()
    def add(oo, T, c, k, breg, xtag):
        mf.append((acc(oo, T), wreg(wslot(om(c)), k, T), breg, [xtag, ("w", om(c), k, T)], (oo, T) not in touched))
        touched.add((oo, T))
    def p1x(r): return xr(1, r & 7)
    for t in range(N1):
        for oo in range(16):
            for ti, T in enumerate((0, 1) if oo % 2 == 0 else (1, 0)):
                for k in ((0, 1, 2) if ti == 0 else (2, 1, 0)):
                    r = oo + k - 1
                    if 0 <= r <= 15: add(oo, T, t, k, p1x(r), ("x", t, r))
            pos[("o", 16 * t + oo)] = len(mf) - 1
    chains, T = [], 0
    NB = 4 if o.outord else 2
    NW = NL + 1 + fown
    def yr(s_, l):
        b = s_ % NB
        return xr(b, l) if b < 2 and not (o.outord and b == 1) else xr(1, l) if (b == 2 and o.outord) else 256 + 24 * NW + (b // 2) * NL * 4 + l * 4
    if o.outord:
        for n_, oo in enumerate(list(range(14)) + ([15, 14] if o.swapend else [14, 15])):
            for ti, T in enumerate((0, 1) if n_ % 2 == 0 else (1, 0)):
                chains += [(oo + k - 1, k, T) for k in ((0, 1, 2) if ti == 0 else (2, 1, 0)) if 0 <= oo + k - 1 <= 15]
    else:
        for s in range(14):
            for k in (2, 1, 0):
                if 0 <= s + 1 - k <= 15: chains += [(s, k, T), (s, k, 1 - T)]; T = 1 - T
        chains += [(14, 2, T), (14, 2, 1 - T)]
        for g1, g2 in (((14, 1), (15, 2)), ((14, 0), (15, 1))):
            chains += [g1 + (T,), g2 + (T,), g1 + (1 - T,), g2 + (1 - T,)] if o.tend else [g1 + (T,), g1 + (1 - T,), g2 + (1 - T,), g2 + (T,)]
    done = {}
    for n_, (s, k, T) in enumerate(chains):
        pos.setdefault(("s", s + 1 - k if o.outord else s), len(mf))
        for l in (range(NL) if n_ % 2 == 0 else range(NL - 1, -1, -1)): add(s + 1 - k, T, N1 + l, k, yr(s, l), ("y", s, l))
        done[(s + 1 - k, T)] = len(mf) - 1
    NM = len(mf)
    assert NM == 1472
    firstuse, lastuse = {}, {}
    for i, m in enumerate(mf):
        for tg in m[3]: firstuse.setdefault(tg, i); lastuse[tg] = i
    bp = kv(o.bpos)
    H = {h: pos[("o", bp.get(h, 16 * (h // 2) + (o.b1 if h % 2 else o.b0)))] for h in HS}
    Q = [pos[("s", int(s))] + o.b2 for s in o.qs.split(",")]
    allb = [H[h] for h in HS] + Q
    assert allb == sorted(allb)
    nxt = lambda g: min(b for b in allb if b > g)
    wtags = lambda w: [("w", w, k, T) for k in range(3) for T in range(2)]
    def xtags(q):
        if q < N1: return [("x", t, r) for t in (q & ~1, q | 1) for r in range(8 * (q & 1), 8 * (q & 1) + 8)]
        return [("y", s, l) for s in (2 * (q - N1), 2 * (q - N1) + 1) for l in range(NL)]
    land, issue_at, prev = {}, {}, {}
    early = set(x.partition("@")[0].partition(".")[0] for x in (pre + "," + post).split(","))
    hof = {c: h for h, c in hs.items()}
    for w in range(16): land[("W", w)] = -1 if w == 0 else H[hof[SEQ[w]]]
    for w in range(16):
        if w >= 4: issue_at[f"w{w}"] = nxt(land[("W", w - 4)]); prev[f"w{w}"] = wtags(w - 4)
        elif f"w{w}" not in early: issue_at[f"w{w}"] = allb[0]; prev[f"w{w}"] = []
    xl = kv(o.xl)
    for q in range(NU):
        for i in range(4): land[("X", q, i)] = -1 if q == 0 else H[2 * q - 2] if q <= N1 else Q[xl[q - N1]]
    land[("P",)] = H[o.pland]
    for t in g0: land[t] = -1
    E = []
    for x in filter(None, o.eb.split(",")):
        g, _, toks = x.partition(":")
        E.append(int(g))
        for t in filter(None, toks.split("+")):
            for tg in tagsof(t): land[tg] = int(g)
    for q in range(3, N1): issue_at[f"x{q}"] = H[2 * (q - 3)]; prev[f"x{q}"] = xtags(q - 4) if q >= 4 else []
    xi = kv(o.xi)
    for p in range(8):
        q = N1 + p
        if q in XPREV:
            pq = XPREV[q]
            g = H[2 * pq + 2] if 2 * pq + 2 in H else Q[0] if pq <= N1 else None
            prev[f"x{q}"] = xtags(pq)
        else:
            ws = [w for w in range(12, 16) if WB + (w % 4) * 24576 < XBASE[q] + 2 * JS and XBASE[q] < WB + (w % 4 + 1) * 24576]
            g = max(nxt(land[("W", w)]) for w in ws)
            prev[f"x{q}"] = sum([wtags(w) for w in ws], [])
        issue_at[f"x{q}"] = max(g, allb[len(HS) + xi[p]] if p in xi else g)
    ptags = [("p", i) for i in range(4)]
    prel = issue_at["x3"] = nxt(land[("P",)]); prev["x3"] = ptags
    bars = {g: ([t for t, b in land.items() if b == g], sum([prev[k] for k, b in issue_at.items() if b == g], [])) for g in allb + E}
    dmas = []
    for tok in filter(None, post.split(",")):
        for op in items(tok): op.earliest = -1; dmas.append(op)
    for g in allb:
        for k in sorted([k for k, b in issue_at.items() if b == g], key=lambda k: land[("W", int(k[1:])) if k[0] == "w" else ("X", int(k[1:]), 0)]):
            for op in items(k): op.earliest = g; dmas.append(op)
        if o.otouch >= 0 and g == H[o.otouch]:
            for op in items("O"): op.earliest = g; dmas.append(op)
    reads = []
    def rd_x(tag, dst, q, off, kk, e):
        b = XBASE[q]
        v, b = ((vXa, vXb)[kk], b) if b < WB else ((vXa2, vXb2)[kk], b - B2) if b < B3 else ((vXa3, vXb3)[kk], b - B3)
        reads.append(Op("r", f"ds_read_b128 {r4(dst)}, v{v} offset:{b + off}", tag, max(e, land[("X", q, off // 2048)])))
    for w in range(16):
        for k in (1, 2, 0):
            for T in (0, 1):
                for h in (0, 1):
                    r = wreg(wslot(w), k, T) + 2 * h
                    reads.append(Op("t", f"ds_read_b64_tr_b16 a[{r}:{r+1}], v{vW + T + (2 if w % 4 >= 2 else 0)} offset:{(w%2)*24576 + k*8192 + h*4096}",
                                    ("w", w, k, T), land[("W", w)]))
    for t in range(N1):
        for r in range(16):
            e = max(lastuse.get(("x", t, r - 8) if r >= 8 else ("x", t - 1, r + 8), -1), firstuse[("x", t, r)] - o.xlead)
            rd_x(("x", t, r), p1x(r), (t & ~1) + (r >> 3), (r & 7) * 1024, t & 1, e)
    for s in range(16):
        for l in range(NL):
            e = max(firstuse[("y", s, l)] - o.ylead, lastuse.get(("y", s - NB, l), -1))
            if xr(1, 0) <= yr(s, l) < 256: e = max(e, lastuse[("x", N1 - 1, 8 + l)])
            rd_x(("y", s, l), yr(s, l), N1 + (s >> 1), (s & 1) * 1024 + (l >> 1) * 2048, l & 1, e)
    for i in range(4):
        reads.append(Op("r", f"ds_read_b128 v[{16+4*i}:{19+4*i}], v{vPl} offset:{PL + i * 256}", ("p", i), land[("P",)]))
        firstuse[("p", i)] = NM
    dl = dict(firstuse)
    for g, (_, tl) in bars.items():
        for tg in tl: dl[tg] = min(dl[tg], g + 1 - o.hoist)
    reads.sort(key=lambda r: (dl[r.tag], r.earliest))
    valu, stores = [], []
    def V(txt, e, cost=1, kind="v", need=None, dep=(), grp=0, pk=None):
        valu.append(Op(kind, txt, None, e, need, cost, dep=dep, grp=grp, pk=pk)); return valu[-1]
    last = None
    def P(txt, cost=1):
        nonlocal last
        last = V(txt, prel, cost, dep=[last] if last else [], grp=-1)
    for e in range(8):
        d = e >> 1; b = PTMP + (e % 2) * 4
        for j, src in enumerate((20, 24, 16, 28)):
            P(f"v_and_b32 v{b+j}, 0xffff0000, v{src+d}" if e & 1 else f"v_lshlrev_b32 v{b+j}, 16, v{src+d}")
        P(f"v_add_f32 v{b}, 0x3727c5ac, v{b}")
        P(f"v_sqrt_f32 v{b}, v{b}", 2)
        P(f"v_rcp_f32 v{b}, v{b}", 2)
        P(f"v_mul_f32 v{b+2}, s34, v{b+2}")
        P(f"v_mul_f32 v{b}, v{b+1}, v{b}")
        P(f"v_mul_f32 v{b+3}, s34, v{b+3}")
        P(f"v_mul_f32 v{PS+e}, s34, v{b}")
        P(f"v_fma_f32 v{PT+e}, -v{b+2}, v{b}, v{b+3}")
    for n_, oo in enumerate(sorted(range(16), key=lambda oo: max(done[(oo, 0)], done[(oo, 1)]))):
        te = TE + (n_ % 2) * 8; ob = acc(oo, 0) + 2
        cv = []
        for T in sorted((0, 1), key=lambda T: done[(oo, T)]):
            e0 = done[(oo, T)] + 2
            a = acc(oo, T); tt = te + T * 4; c = T * 4
            pr = lambda x: f"v[{x}:{x+1}]"
            z = [V(f"v_fma_f32 v{a+r}, v{a+r}, v{PS+c+r}, v{PT+c+r}", e0, need=done[(oo, T)], grp=n_,
                   pk=f"v_pk_fma_f32 {pr(a+r)}, {pr(a+r)}, {pr(PS+c+r)}, {pr(PT+c+r)}" if r % 2 == 0 else None) for r in range(4)]
            x = [V(f"v_exp_f32 v{tt+r}, {'' if o.neg else '-'}v{a+r}", e0, 2, dep=[z[r]], grp=n_) for r in range(4)]
            d = [V(f"v_fma_f32 v{tt+r}, v{tt+r}, s34, s34", e0, dep=[x[r]], grp=n_,
                   pk=f"v_pk_fma_f32 {pr(tt+r)}, {pr(tt+r)}, s[34:35], s[34:35]" if r % 2 == 0 else None) for r in range(4)]
            q = [V(f"v_rcp_f32 v{tt+r}, v{tt+r}", e0, 2, dep=[d[r]], grp=n_) for r in range(4)]
            m = [V(f"v_mul_f32 v{a+r}, v{a+r}, v{tt+r}", e0, dep=[q[r]], grp=n_,
                   pk=f"v_pk_mul_f32 {pr(a+r)}, {pr(a+r)}, {pr(tt+r)}" if r % 2 == 0 else None) for r in range(4)]
            for p in ((1, 0) if T == 0 else (0, 1)):
                cv.append(V(f"v_cvt_pk_bf16_f32 v{ob+T*2+p}, v{a+2*p}, v{a+2*p+1}", e0, dep=m[2*p:2*p+2] + cv[-1:] * (len(cv) % 2), grp=n_))
        if not o.nostore:
            stores.append(Op("st", f"buffer_store_dwordx4 v[{ob}:{ob+3}], v{vOut}, s[{sO}:{sO+3}], {['0','s36','s37','s38'][oo//4]} offen offset:{(oo%4)*1024} {o.stflag if n_ < 16 - o.nlast else o.stlast}", dep=cv, grp=n_))
    first = sorted([r for r in reads if r.tag[:2] == ("w", 0)], key=lambda r: firstuse[r.tag])
    fx = [r for r in reads if r.tag in (("x", 0, 0), ("x", 0, 1), ("x", 0, 2))]
    for op in fx[:1] + first[:2] + fx[1:2] + first[2:8] + fx[2:] + first[8:]:
        A(op.text); lq.append(op.tag); reads.remove(op)
    at = {}
    def rdy(v, i):
        if v.earliest > i or (v.need is not None and len(L) - at[v.need] - 1 < 8): return False
        return all(d.at is not None and len(L) - d.at - 1 >= (0 if v.grp < 0 and d.cost == 1 else 1) for d in v.dep)
    def pick(i, room, kind="v"):
        g0_ = valu[0].grp if valu else 0
        for v in valu:
            if v.grp > g0_ + (1 if o.look else 0): break
            if v.kind == kind and v.cost <= room and rdy(v, i): return v
            if not o.look: break
        return None
    def put(v): v.at = len(L); A(v.text); valu.remove(v)
    A(f"s_waitcnt lgkmcnt({lgwait(mf[0][3])})")
    hops = kv(o.hop)
    di = over = 0; staged = False; lastdma = -10; firststore = None; lastst = -100
    for i in range(NM):
        if i == pos[("s", 0)]: stamp(3)
        at[i] = len(L)
        D, a, b, needs, fst = mf[i]
        if not o.nomfma: A(f"v_mfma_f32_16x16x32_bf16 v[{D}:{D+3}], a[{a}:{a+3}], {r4(b)}, {'0' if fst else f'v[{D}:{D+3}]'}")
        if i in hops: walk(hops[i])
        slot = 1
        if i in bars:
            A("s_barrier"); slot += 1 + o.barpad
            if o.traj: tstamp()
        j = i + o.hoist
        if j in bars:
            if not o.hoist: L.pop(-2 if o.traj else -1)
            assert not [r.tag for r in reads if r.tag in bars[j][1]], (j, [r.tag for r in reads if r.tag in bars[j][1]])
            assert not [d.tag for d in dmas[di:] if d.tag in bars[j][0]], (j, "load not issued before its barrier", [d.tag for d in dmas[di:] if d.tag in bars[j][0]])
            nv, nl = vmwait(bars[j][0]), lgwait(bars[j][1] + (mf[i + 1][3] if o.hoist else []))
            w = " ".join(x for x in (f"vmcnt({nv})" if nv is not None else "", f"lgkmcnt({nl})" if nl is not None else "") if x)
            ts = L.pop() if o.traj and not o.hoist else None
            if w: A("s_waitcnt " + w); slot += 1
            if not o.hoist: A("s_barrier")
            if ts: L.append(ts)
        if i + 1 < NM:
            assert not [r.tag for r in reads if r.tag in mf[i + 1][3]], (i, mf[i + 1][3])
            nl = lgwait(mf[i + 1][3])
            if nl is not None: A(f"s_waitcnt lgkmcnt({nl})"); slot += 1
        if not staged and di < len(dmas) and dmas[di].earliest <= i and not salu_needed(dmas[di].sal): staged = True
        sp = (o.dspace0 if dmas[di].earliest < 0 else o.dspace if i < H[o.dlate] else o.dspace2) / 10 if di < len(dmas) else 0
        if staged and slot == 1 and i >= lastdma + sp:
            lastdma = lastdma + sp if i < lastdma + sp + 1.5 else i
            issue(dmas[di]); di += 1; staged = False
            continue
        if stores and slot == 1 and di == len(dmas) and i >= pos[("s", 0)] + o.st0 and i >= lastst + o.stsp and rdy(stores[0], i):
            A(stores.pop(0).text); vm.append(("S",)); lastst = i
            if firststore is None: firststore = i
            continue
        rd = next((r for r in reads if r.earliest <= i), None)
        if not staged and di < len(dmas) and dmas[di].earliest <= i:
            need = salu_needed(dmas[di].sal)
            vr = pick(i, 2)
            room = 3 if not (rd or vr) else 2 if not (rd and vr) and not (vr and vr.cost == 2) else 1
            while need and slot <= room: emit_salu(need.pop(0)); slot += 1
            if not need: staged = True
        slot = max(slot, 2)
        if rd and slot <= 3 and len(lq) < 15:
            A(rd.text); lq.append(rd.tag); reads.remove(rd); slot += 1
            if dl[rd.tag] - i < o.warn: print(f"; WARN late read {rd.tag} gap {i} deadline {dl[rd.tag]}", file=sys.stderr)
        while slot < 4:
            v = pick(i, 4 - slot)
            if not v: break
            put(v); slot += v.cost
        over += max(0, slot - 4)
    assert not reads and di == len(dmas)
    print(f"; leftover VALU {len(valu)} (cost {sum(v.cost for v in valu)}), overflow {over}, first store {firststore}, bars {allb}", file=sys.stderr)
    stamp(4)
    print(f"; stores left {len(stores)}; last load issued at gap {lastdma}", file=sys.stderr)
    i = 0
    while i < len(valu):
        v = valu[i]
        while stores and all(d.at is not None for d in stores[0].dep): A(stores.pop(0).text)
        if v.need is not None and not o.nomfma:
            gap = 8 - (len(L) - at[v.need] - 1)
            if gap > 0: A(f"s_nop {gap - 1}"); at[v.need] -= 8
        two = v.pk and i + 1 < len(valu) and valu[i + 1].text.split()[0] == v.text.split()[0] and not valu[i + 1].pk and o.pk
        if any(d.at == len(L) - 1 and d.cost == 2 for d in v.dep + (valu[i + 1].dep if two else [])): A("s_nop 0")
        v.at = len(L)
        if two: valu[i + 1].at = len(L); A(v.pk); i += 2
        else: A(v.text); i += 1
    for st in stores: A(st.text)
    pad(5)
    if o.stamps:
        A("s_waitcnt vmcnt(0)")
        stamp(5)
        A("s_cmp_lg_u32 s3, 0")
        A("s_cbranch_scc1 L_end")
        for s in ("s_mov_b32 s20, s74", "s_and_b32 s21, s75, 0xffff", "s_mov_b32 s22, 0x100000", "s_waitcnt lgkmcnt(0)",
                  "s_lshl_b32 s33, s2, 7", "v_mov_b32 v6, 0"): A(s)
        for i in range(tn[0]):
            A(f"v_mov_b32 v12, s{TR[i]}")
            A(f"buffer_store_dword v12, v6, s[20:23], s33 offen offset:{4*i}")
        for i in range(0 if o.traj else 6):
            base = 40 + 4 * i if i < 3 else 80 + 4 * (i - 3)
            for jx in range(4): A(f"v_mov_b32 v{12+jx}, s{base+jx}")
            A(f"buffer_store_dwordx4 v[12:15], v6, s[20:23], s33 offen offset:{16*i}")
            A("s_nop 1")
    L.append("L_end:")
    A("s_endpgm")
    A(".fill 2048, 4, 0xbf810000")
    if o.abl:
        i0 = next(i for i, x in enumerate(L) if "v_mfma" in x) + 200
        drop = {"x": "ds_read_b128", "w": "ds_read_b64_tr", "e": ("v_exp", "v_rcp"), "v": ("v_exp", "v_rcp", "v_fma", "v_mul", "v_cvt"), "d": "buffer_load_dwordx4", "s": "buffer_store_dwordx4 v[1", "t": "buffer_store_dwordx4 v[2"}
        pre_ = tuple(sum([[drop[c]] if isinstance(drop[c], str) else list(drop[c]) for c in o.abl], []))
        L = [x for i, x in enumerate(L) if i < i0 or not x.strip().startswith(pre_) or "s[20:23]" in x]
    if not o.nomfma and not o.abl: check_hazards(L)
    if NST: L = insert_stubs(L, NST, o.ioff)
    return HEADER + f"; @launch grid=(256,1,1) block=(256,1,1) lds={LDS}\n" + \
        '.amdgcn_target "amdgcn-amd-amdhsa--gfx950"\n.text\n' + \
        f".globl {KN}\n.p2align 12\n.p2align 8\n.type {KN},@function\n" + "\n".join(L) + "\n" + \
        f""".section .rodata,"a"
.p2align 6
.amdhsa_kernel {KN}
  .amdhsa_next_free_vgpr {256 + 24 * NW + (8 * NL if o.outord else 0)}
  .amdhsa_next_free_sgpr 102
  .amdhsa_accum_offset 256
  .amdhsa_group_segment_fixed_size 0
  .amdhsa_kernarg_size 72
  .amdhsa_user_sgpr_count 2
  .amdhsa_user_sgpr_kernarg_segment_ptr 1
  .amdhsa_system_sgpr_workgroup_id_x 1
  .amdhsa_float_denorm_mode_32 3
.end_amdhsa_kernel
"""

def insert_stubs(L, n, base):
    import subprocess, tempfile
    txt = '.amdgcn_target "amdgcn-amd-amdhsa--gfx950"\n.text\n' + "\n".join(L) + "\n" + "".join(f"L_stub{k}:\n" for k in range(n))
    d = tempfile.mkdtemp()
    open(d + "/a.s", "w").write(txt)
    subprocess.check_call(["clang", "-x", "assembler", "-target", "amdgcn-amd-amdhsa", "-mcpu=gfx950", "-c", d + "/a.s", "-o", d + "/a.o"])
    dis = subprocess.check_output(["llvm-objdump", "-d", "--mcpu=gfx950", d + "/a.o"], text=True)
    addrs = [int(m.group(1), 16) for m in re.finditer(r"// ([0-9A-F]{12}):", dis)]
    amap = dict(zip([i for i, x in enumerate(L) if x.startswith("    ") and not x.strip().startswith(".")], addrs))
    out, k = [], 0
    for i, x in enumerate(L):
        if k < n and i in amap and base + amap[i] + 4 * k >= (base // 0x1000 + 1 + k) * 0x1000:
            out.append(f"L_stub{k}:"); out.append(f"    s_cbranch_vccnz L_back{k // 4}"); k += 1
        out.append(x)
    assert k == n, k
    return out

if __name__ == "__main__":
    ap = argparse.ArgumentParser()
    ap.add_argument("out")
    for f in ("traj", "stamps", "nomfma", "nodma", "nostore"): ap.add_argument("--" + f, action="store_true")
    for k, v in dict(stlast="sc1", abl="", hop="", pad="", stflag="sc1 nt", porder="w0,x0.01,I,x0.23,S,A,x1,L,w1.01,B|w1.2345,x2,w2", g0="x0.01",
                     eb="8:x0.23,32:x1.01,56:x1.23+L", bpos="0:12", fh="5,7,9,11,13,15", place="r,r,0,1,2,3,4,5", qs="0,4",
                     xi="", xl="1:0,2:0,3:0,4:1,5:1,6:1,7:1").items(): ap.add_argument("--" + k, default=v)
    for k, v in dict(rot=1, nlast=1, early=1, hoist=1, neg=1, pland=0, swapend=1, barpad=0, st0=200, stsp=20, dlate=14, otouch=-1, n1=10, nst=6, ioff=0x2300, b0=5, b1=11, b2=4, xlead=16, ylead=30, dspace=58, dspace0=40, dspace2=70,
                     warn=8, holdst=1, look=1, pk=1, tend=1, outord=1).items(): ap.add_argument("--" + k, type=int, default=v)
    o = ap.parse_args()
    open(o.out, "w").write(gen(o))
```

```python
import sys, argparse, re
from hazard import check_hazards

KN = "standalone__batchnorm__sampling_kernel"
HEADER = """; conv1d(K=3) as MFMA GEMM + folded BatchNorm + SiLU.  Generated by tools/gen4.py (hand-written generator).
; x and w reach LDS by buffer_load ... lds (rings of 4 x 16 KB and 4 x 24 KB), published by vmcnt + s_barrier.
"""
WB = 65536
WB2 = WB + 8192
LDS = WB + 4 * 24576
PL = 3 * 16384
sX, sW, sO, sP = 8, 12, 16, 20
vXa, vXb, vW = 1, 2, 3
vDW, vDX, vOut, vPar = 7, 8, 10, 11
vXa2, vXb2, vXa3, vXb3 = 12, 13, 14, 15
TE, OB = 16, 32
vPl, vDump, vI = 37, 38, 39
PS, PT, PTMP = 40, 48, 56
XR, ACC = 64, 128
def acc(o, T): return ACC + (o * 2 + T) * 4
def wreg(slot, k, T): return slot * 24 + (k * 2 + T) * 4
def xr(b, l): return XR + b * 32 + l * 4
def r4(x): return f"v[{x}:{x+3}]" if x < 256 else f"a[{x-256}:{x-253}]"
def kv(s): return dict((int(a), int(b)) for a, b in (x.split(":") for x in s.split(",") if x))

class Op:
    def __init__(self, kind, text, tag=None, earliest=0, need=None, cost=1, sal=(), dep=(), grp=0, pk=None):
        self.kind, self.text, self.tag, self.earliest, self.need, self.cost = kind, text, tag, earliest, need, cost
        self.sal, self.dep, self.grp, self.pk, self.at = list(sal), list(dep), grp, pk, None

def gen(o):
    N1 = o.n1; NL = 16 - N1; NU = N1 + 8
    fh = [int(x) for x in o.fh.split(",")]
    fown = fh[-1] < 2 * N1 - 2
    assert len(fh) == NL
    hs = {2 * t: t + 1 for t in range(N1 - 1)}
    for l, h in enumerate(fh): assert h not in hs; hs[h] = N1 + l
    SEQ = [0] + [hs[h] for h in sorted(hs)]
    HS = sorted(set(hs) | {2 * N1 - 2})
    om = SEQ.index
    def wslot(w): c = SEQ[w]; return c % 2 if c < N1 else 0 if c == 15 and not fown else c - N1 + 2
    place = o.place.split(",")
    JS = 8192 if NL == 8 else NL * 1024
    WPOS = [WB2, WB + 24576, WB + 49152] if NL == 8 else [WB + 2 * JS * j for j in range(8)]
    XBASE = {q: (q % 4) * 16384 for q in range(N1)}
    XPREV, nr = {}, N1
    for p, w in enumerate(place):
        if w == "r": XBASE[N1 + p] = (nr % 4) * 16384; XPREV[N1 + p] = max(q for q in range(N1 + p) if XBASE.get(q) == XBASE[N1 + p]); nr += 1
        else: XBASE[N1 + p] = WPOS[int(w)]
    B2 = WPOS[0]; B3 = B2 + 61440
    L = []
    A = lambda s: L.append("    " + s)
    def pad(i):
        if o.pad and int(o.pad.split(":")[0]) == i:
            n = int(float(o.pad.split(":")[1]) * 100)
            if i == 5: A("s_waitcnt vmcnt(0)")
            L.append(f"L_pad{i}:")
            for s in ("s_sleep 1", "s_memrealtime s[96:97]", "s_waitcnt lgkmcnt(0)", "s_sub_u32 s96, s96, s98",
                      f"s_cmp_lt_u32 s96, {n}", f"s_cbranch_scc1 L_pad{i}"): A(s)
    TR = list(range(40, 52, 2)) + list(range(80, 102, 2)) + [64, 66, 68, 70, 28, 30, 72, 24, 26, 62]
    tn = [0]
    def tstamp(): A(f"s_memtime s[{TR[tn[0]]}:{TR[tn[0]]+1}]"); tn[0] += 1
    def stamp(i):
        if o.pad and i == 0: A("s_memrealtime s[98:99]")
        if i != 5: pad(i)
        if o.traj:
            if i in (0, 2, 4, 5): tstamp()
        elif o.stamps:
            A(f"s_memtime s[{40+2*i}:{41+2*i}]")
            A(f"s_memrealtime s[{80+2*i}:{81+2*i}]")
    L.append(KN + ":")
    stamp(0)
    A("s_load_dwordx4 s[28:31], s[0:1], 0")
    A("s_load_dwordx8 s[64:71], s[0:1], 16")
    A("s_load_dwordx2 s[72:73], s[0:1], 48")
    if o.stamps: A("s_load_dwordx2 s[74:75], s[0:1], 64")
    A("s_cmp_ge_u32 s2, 256")
    A("s_cbranch_scc1 L_end")
    A("v_lshrrev_b32 v56, 6, v0")
    A("v_and_b32 v0, 63, v0")
    A("v_readfirstlane_b32 s3, v56")
    A("s_and_b32 s4, s2, 7")
    A("s_lshr_b32 s5, s2, 3")
    A("s_and_b32 s6, s5, 3")
    A("s_lshr_b32 s33, s5, 2")
    A("s_lshl_b32 s7, s4, 3")
    A("s_add_u32 s7, s7, s33")
    A("s_lshl_b32 s7, s7, 18")
    A("s_lshl_b32 s6, s6, 8")
    A("s_lshl_b32 s59, s4, 16")
    A("s_lshl_b32 s58, s4, 7")
    A("v_lshrrev_b32 v56, 4, v0")
    A("v_and_b32 v57, 15, v0")
    A("v_and_b32 v58, 1, v56")
    A("v_lshlrev_b32 v58, 2, v58")
    A("v_or_b32 v58, s3, v58")
    A("v_lshlrev_b32 v58, 1, v58")
    A("v_xor_b32 v58, v58, v57")
    A("v_lshlrev_b32 v58, 4, v58")
    A("v_lshl_add_u32 v58, v56, 13, v58")
    A("s_lshl_b32 s33, s3, 10")
    A("s_add_u32 s34, s33, s6")
    A(f"v_add_u32 v{vDW}, s34, v58")
    A(f"s_add_u32 s60, s33, {WB}")
    A("s_and_b32 s35, s3, 1")
    A("s_lshr_b32 s36, s3, 1")
    A("v_lshrrev_b32 v59, 3, v0")
    A("v_and_b32 v60, 7, v0")
    A("v_lshrrev_b32 v61, 1, v59")
    A("s_lshl_b32 s37, s35, 2")
    A("v_add_u32 v61, s37, v61")
    A("v_xor_b32 v61, v61, v60")
    A("v_lshlrev_b32 v61, 4, v61")
    A("v_lshl_add_u32 v61, v59, 14, v61")
    A("s_lshl_b32 s37, s35, 17")
    A("s_add_u32 s37, s37, s7")
    A("s_lshl_b32 s38, s36, 10")
    A("s_add_u32 s39, s37, s38")
    A(f"v_add_u32 v{vDX}, s39, v61")
    A("s_lshl_b32 s61, s35, 13")
    A("s_add_u32 s61, s61, s38")
    A(f"s_mov_b32 s{sX+2}, 0x1000000")
    A(f"s_mov_b32 s{sX+3}, 0x20000")
    A(f"s_mov_b32 s{sW+2}, 0x180000")
    A(f"s_mov_b32 s{sW+3}, 0x20000")
    A("s_getpc_b64 s[56:57]")
    A("s_lshl_b32 s39, s5, 2")
    A("s_add_u32 s39, s39, s3")
    A("s_lshl_b32 s39, s39, 8")
    A(f"v_and_b32 v{vI}, 1, v0")
    A(f"v_lshl_add_u32 v{vI}, v{vI}, 7, s39")
    def setup1():
        A(f"s_mov_b32 s32, {B2}")
        A("v_lshrrev_b32 v58, 1, v57")
        A("v_xor_b32 v58, v58, v56")
        A("v_lshlrev_b32 v58, 4, v58")
        A("v_and_b32 v59, 7, v57")
        A("v_lshl_add_u32 v58, v59, 7, v58")
        A("v_lshrrev_b32 v59, 3, v57")
        A(f"v_lshl_add_u32 v{vXa}, v59, 13, v58")
        A(f"v_xor_b32 v{vXb}, 64, v{vXa}")
        A(f"v_mul_u32_u24 v59, {JS}, v59")
        A(f"v_add3_u32 v{vXa2}, v59, v58, s32")
        A(f"v_xor_b32 v{vXb2}, 64, v{vXa2}")
        A(f"v_add_u32 v{vXa3}, 61440, v{vXa2}")
        A(f"v_add_u32 v{vXb3}, 61440, v{vXb2}")
        A(f"s_mul_i32 s32, s35, {JS}")
        A("s_add_u32 s32, s32, s38")
        A("v_lshrrev_b32 v58, 2, v57")
        A("v_and_b32 v59, 3, v0")
        A("v_and_b32 v62, 1, v56")
        A("v_lshl_add_u32 v62, v62, 2, v58")
        A("v_lshlrev_b32 v62, 1, v62")
        A("s_lshl_b32 s34, s3, 2")
        A("v_add_u32 v63, s34, v59")
        A("v_xor_b32 v63, v63, v62")
        A("v_lshlrev_b32 v63, 4, v63")
        A("v_lshl_add_u32 v63, v58, 10, v63")
        A("v_lshl_add_u32 v63, v56, 8, v63")
        A(f"v_add_u32 v{vW}, {WB}, v63")
        A(f"v_xor_b32 v{vW+1}, 8, v{vW}")
        A(f"v_add_u32 v{vW+2}, 49152, v{vW}")
        A(f"v_add_u32 v{vW+3}, 49152, v{vW+1}")
        A("s_lshl_b32 s33, s3, 6")
        A(f"v_lshl_add_u32 v{vPl}, v56, 4, s33")
        A("s_add_u32 s33, s6, s7")
        A(f"v_lshl_add_u32 v58, v57, 14, v{vPl}")
        A(f"v_add_u32 v{vOut}, s33, v58")
        A(f"s_mov_b32 s{sO+2}, 0x1000000")
        A(f"s_mov_b32 s{sO+3}, 0x20000")
        A(f"s_mov_b32 s34, {'0xbfb8aa3b' if o.neg else '0x3fb8aa3b'}")
        A("s_mov_b32 s35, s34")
        A("s_mov_b32 s36, 4096")
        A("s_mov_b32 s37, 8192")
        A("s_mov_b32 s38, 12288")
        A(f"s_mov_b32 s{sP+2}, 1024")
        A(f"s_mov_b32 s{sP+3}, 0x20000")
        A(f"v_lshlrev_b32 v{vPar}, 2, v0")
        A("s_lshl_b32 s39, s3, 8")
    if o.early: setup1()
    A("s_waitcnt lgkmcnt(0)")
    stamp(1)
    A(f"s_mov_b32 s{sX}, s28")
    A(f"s_and_b32 s{sX+1}, s29, 0xffff")
    A(f"s_mov_b32 s{sW}, s30")
    A(f"s_and_b32 s{sW+1}, s31, 0xffff")

    vm, lq = [], []
    tmpi = [0]
    def stmp(): tmpi[0] += 1; return 52 + tmpi[0] % 4
    def items(tok):
        r = []
        n, _, part = tok[1:].partition(".")
        if tok[0] == "w":
            w = int(n)
            for grp in ([int(c) for c in part] if part else range(6)):
                st = stmp()
                r.append(Op("d", f"buffer_load_dwordx4 v{vDW}, s[{sW}:{sW+3}], s{st} offen lds", ("W", w),
                            sal=[f"s_add_u32 m0, s60, {(w % 4) * 24576 + grp * 4096}",
                                 f"s_xor_b32 s{st}, s59, {SEQ[w] * 32768 + (grp // 2) * 524288 + (grp % 2) * 4096}"]))
        elif tok[0] == "x":
            q = int(n)
            for i in ([int(c) for c in part] if part else range(4 if q < N1 else NL // 2)):
                if q >= N1 or i % 2 == 0 or not r: st = stmp()
                if q < N1:
                    r.append(Op("d", f"buffer_load_dwordx4 v{vDX}, s[{sX}:{sX+3}], s{st} offen offset:{(i&1)*2048} nt lds", ("X", q, i),
                                sal=[f"s_add_u32 m0, s61, {XBASE[q] + (i >> 1) * 4096}", f"s_xor_b32 s{st}, s58, {(q >> 1) * 128 + (q & 1) * 8192 + (i >> 1) * 4096}"]))
                else:
                    r.append(Op("d", f"buffer_load_dwordx4 v{vDX}, s[{sX}:{sX+3}], s{st} offen nt lds", ("X", q, i),
                                sal=[f"s_add_u32 m0, s{61 if XBASE[q] < WB else 32}, {XBASE[q] + i * 2048}", f"s_xor_b32 s{st}, s58, {(q - N1) * 2048 + (N1 // 2 + i) * 128}"]))
        elif tok == "I":
            r.append(Op("d", f"global_load_dword v{vDump}, v{vI}, s[56:57]", ("F",)))
        elif tok == "O":
            r.append(Op("d", f"buffer_load_dword v{vDump}, off, s[{sO}:{sO+3}], s7 nt", ("F",)))
        elif tok == "L":
            r.append(Op("d", f"buffer_load_dword v{vPar}, s[{sP}:{sP+3}], s6 offen lds", ("P",), sal=[f"s_add_u32 m0, s39, {PL}"]))
        return r
    have = {}
    def salu_needed(sal): return [s for s in sal if have.get(s.split()[1]) != s]
    def emit_salu(s): A(s); have[s.split()[1]] = s
    def issue(op):
        if o.nodma and "lds" in op.text: return
        A(op.text); vm.append(op.tag)
    NST = o.nst
    def walk(rnd):
        if not NST: return
        A("s_mov_b64 vcc, 1")
        for k in range(4 * rnd, min(NST, 4 * rnd + 4)):
            A(f"s_cmp_eq_u32 s3, {k - 4 * rnd}")
            A(f"s_cbranch_scc1 L_stub{k}")
        L.append(f"L_back{rnd}:")
        A("s_mov_b64 vcc, 0")
    def setup():
        if not o.early: setup1()
        A(f"s_mov_b32 s{sO}, s72")
        A(f"s_and_b32 s{sO+1}, s73, 0xffff")
        for i in range(1, 4):
            A(f"s_cmp_eq_u32 s3, {i}")
            A(f"s_cselect_b64 s[64:65], s[{64+2*i}:{65+2*i}], s[64:65]")
        A(f"s_mov_b32 s{sP}, s64")
        A(f"s_and_b32 s{sP+1}, s65, 0xffff")
    pre, _, post = o.porder.partition("|")
    for tok in filter(None, pre.split(",")):
        if tok == "S": setup()
        elif tok in "ABC": walk("ABC".index(tok))
        else:
            for op in items(tok):
                for s in salu_needed(op.sal): emit_salu(s)
                if L[-1].split()[1].startswith("m0"): A("s_nop 0")
                issue(op)
    def qwait(q, tags, mx):
        idx = max([i for i, t in enumerate(q) if t in tags], default=-1)
        if idx < 0: return None
        n = len(q) - 1 - idx
        del q[:idx + 1]
        assert n <= mx, n
        return n
    vmwait = lambda tags: qwait(vm, tags, 63)
    lgwait = lambda tags: qwait(lq, tags, 15)
    def tagsof(tok):
        if tok == "L": return [("P",)]
        q, _, part = tok[1:].partition(".")
        return [("X", int(q), int(c)) for c in (part or "0123")]
    g0 = sum([tagsof(t) for t in o.g0.split(",") if t], [])
    n = vmwait([("W", 0)] + g0)
    if n is not None: A(f"s_waitcnt vmcnt({n})")
    A("s_barrier")
    stamp(2)

    mf, pos, touched = [], {}, set()
    def add(oo, T, c, k, breg, xtag):
        mf.append((acc(oo, T), wreg(wslot(om(c)), k, T), breg, [xtag, ("w", om(c), k, T)], (oo, T) not in touched))
        touched.add((oo, T))
    def p1x(r): return xr(1, r & 7)
    for t in range(N1):
        for oo in range(16):
            for ti, T in enumerate((0, 1) if oo % 2 == 0 else (1, 0)):
                for k in ((0, 1, 2) if ti == 0 else (2, 1, 0)):
                    r = oo + k - 1
                    if 0 <= r <= 15: add(oo, T, t, k, p1x(r), ("x", t, r))
            pos[("o", 16 * t + oo)] = len(mf) - 1
    chains, T = [], 0
    NB = 4 if o.outord else 2
    NW = NL + 1 + fown
    def yr(s_, l):
        b = s_ % NB
        return xr(b, l) if b < 2 and not (o.outord and b == 1) else xr(1, l) if (b == 2 and o.outord) else 256 + 24 * NW + (b // 2) * NL * 4 + l * 4
    if o.outord:
        for n_, oo in enumerate(list(range(14)) + ([15, 14] if o.swapend else [14, 15])):
            for ti, T in enumerate((0, 1) if n_ % 2 == 0 else (1, 0)):
                chains += [(oo + k - 1, k, T) for k in ((0, 1, 2) if ti == 0 else (2, 1, 0)) if 0 <= oo + k - 1 <= 15]
    else:
        for s in range(14):
            for k in (2, 1, 0):
                if 0 <= s + 1 - k <= 15: chains += [(s, k, T), (s, k, 1 - T)]; T = 1 - T
        chains += [(14, 2, T), (14, 2, 1 - T)]
        for g1, g2 in (((14, 1), (15, 2)), ((14, 0), (15, 1))):
            chains += [g1 + (T,), g2 + (T,), g1 + (1 - T,), g2 + (1 - T,)] if o.tend else [g1 + (T,), g1 + (1 - T,), g2 + (1 - T,), g2 + (T,)]
    done = {}
    for n_, (s, k, T) in enumerate(chains):
        pos.setdefault(("s", s + 1 - k if o.outord else s), len(mf))
        for l in (range(NL) if n_ % 2 == 0 else range(NL - 1, -1, -1)): add(s + 1 - k, T, N1 + l, k, yr(s, l), ("y", s, l))
        done[(s + 1 - k, T)] = len(mf) - 1
    NM = len(mf)
    assert NM == 1472
    firstuse, lastuse = {}, {}
    for i, m in enumerate(mf):
        for tg in m[3]: firstuse.setdefault(tg, i); lastuse[tg] = i
    bp = kv(o.bpos)
    H = {h: pos[("o", bp.get(h, 16 * (h // 2) + (o.b1 if h % 2 else o.b0)))] for h in HS}
    Q = [pos[("s", int(s))] + o.b2 for s in o.qs.split(",")]
    allb = [H[h] for h in HS] + Q
    assert allb == sorted(allb)
    nxt = lambda g: min(b for b in allb if b > g)
    wtags = lambda w: [("w", w, k, T) for k in range(3) for T in range(2)]
    def xtags(q):
        if q < N1: return [("x", t, r) for t in (q & ~1, q | 1) for r in range(8 * (q & 1), 8 * (q & 1) + 8)]
        return [("y", s, l) for s in (2 * (q - N1), 2 * (q - N1) + 1) for l in range(NL)]
    land, issue_at, prev = {}, {}, {}
    early = set(x.partition("@")[0].partition(".")[0] for x in (pre + "," + post).split(","))
    hof = {c: h for h, c in hs.items()}
    for w in range(16): land[("W", w)] = -1 if w == 0 else H[hof[SEQ[w]]]
    for w in range(16):
        if w >= 4: issue_at[f"w{w}"] = nxt(land[("W", w - 4)]); prev[f"w{w}"] = wtags(w - 4)
        elif f"w{w}" not in early: issue_at[f"w{w}"] = allb[0]; prev[f"w{w}"] = []
    xl = kv(o.xl)
    for q in range(NU):
        for i in range(4): land[("X", q, i)] = -1 if q == 0 else H[2 * q - 2] if q <= N1 else Q[xl[q - N1]]
    land[("P",)] = H[o.pland]
    for t in g0: land[t] = -1
    E = []
    for x in filter(None, o.eb.split(",")):
        g, _, toks = x.partition(":")
        E.append(int(g))
        for t in filter(None, toks.split("+")):
            for tg in tagsof(t): land[tg] = int(g)
    for q in range(3, N1): issue_at[f"x{q}"] = H[2 * (q - 3)]; prev[f"x{q}"] = xtags(q - 4) if q >= 4 else []
    xi = kv(o.xi)
    for p in range(8):
        q = N1 + p
        if q in XPREV:
            pq = XPREV[q]
            g = H[2 * pq + 2] if 2 * pq + 2 in H else Q[0] if pq <= N1 else None
            prev[f"x{q}"] = xtags(pq)
        else:
            ws = [w for w in range(12, 16) if WB + (w % 4) * 24576 < XBASE[q] + 2 * JS and XBASE[q] < WB + (w % 4 + 1) * 24576]
            g = max(nxt(land[("W", w)]) for w in ws)
            prev[f"x{q}"] = sum([wtags(w) for w in ws], [])
        issue_at[f"x{q}"] = max(g, allb[len(HS) + xi[p]] if p in xi else g)
    ptags = [("p", i) for i in range(4)]
    prel = issue_at["x3"] = nxt(land[("P",)]); prev["x3"] = ptags
    bars = {g: ([t for t, b in land.items() if b == g], sum([prev[k] for k, b in issue_at.items() if b == g], [])) for g in allb + E}
    dmas = []
    for tok in filter(None, post.split(",")):
        for op in items(tok): op.earliest = -1; dmas.append(op)
    for g in allb:
        for k in sorted([k for k, b in issue_at.items() if b == g], key=lambda k: land[("W", int(k[1:])) if k[0] == "w" else ("X", int(k[1:]), 0)]):
            for op in items(k): op.earliest = g; dmas.append(op)
        if o.otouch >= 0 and g == H[o.otouch]:
            for op in items("O"): op.earliest = g; dmas.append(op)
    reads = []
    def rd_x(tag, dst, q, off, kk, e):
        b = XBASE[q]
        v, b = ((vXa, vXb)[kk], b) if b < WB else ((vXa2, vXb2)[kk], b - B2) if b < B3 else ((vXa3, vXb3)[kk], b - B3)
        reads.append(Op("r", f"ds_read_b128 {r4(dst)}, v{v} offset:{b + off}", tag, max(e, land[("X", q, off // 2048)])))
    for w in range(16):
        for k in (1, 2, 0):
            for T in (0, 1):
                for h in (0, 1):
                    r = wreg(wslot(w), k, T) + 2 * h
                    reads.append(Op("t", f"ds_read_b64_tr_b16 a[{r}:{r+1}], v{vW + T + (2 if w % 4 >= 2 else 0)} offset:{(w%2)*24576 + k*8192 + h*4096}",
                                    ("w", w, k, T), land[("W", w)]))
    for t in range(N1):
        for r in range(16):
            e = max(lastuse.get(("x", t, r - 8) if r >= 8 else ("x", t - 1, r + 8), -1), firstuse[("x", t, r)] - o.xlead)
            rd_x(("x", t, r), p1x(r), (t & ~1) + (r >> 3), (r & 7) * 1024, t & 1, e)
    for s in range(16):
        for l in range(NL):
            e = max(firstuse[("y", s, l)] - o.ylead, lastuse.get(("y", s - NB, l), -1))
            if xr(1, 0) <= yr(s, l) < 256: e = max(e, lastuse[("x", N1 - 1, 8 + l)])
            rd_x(("y", s, l), yr(s, l), N1 + (s >> 1), (s & 1) * 1024 + (l >> 1) * 2048, l & 1, e)
    for i in range(4):
        reads.append(Op("r", f"ds_read_b128 v[{16+4*i}:{19+4*i}], v{vPl} offset:{PL + i * 256}", ("p", i), land[("P",)]))
        firstuse[("p", i)] = NM
    dl = dict(firstuse)
    for g, (_, tl) in bars.items():
        for tg in tl: dl[tg] = min(dl[tg], g + 1 - o.hoist)
    reads.sort(key=lambda r: (dl[r.tag], r.earliest))
    valu, stores = [], []
    def V(txt, e, cost=1, kind="v", need=None, dep=(), grp=0, pk=None):
        valu.append(Op(kind, txt, None, e, need, cost, dep=dep, grp=grp, pk=pk)); return valu[-1]
    last = None
    def P(txt, cost=1):
        nonlocal last
        last = V(txt, prel, cost, dep=[last] if last else [], grp=-1)
    for e in range(8):
        d = e >> 1; b = PTMP + (e % 2) * 4
        for j, src in enumerate((20, 24, 16, 28)):
            P(f"v_and_b32 v{b+j}, 0xffff0000, v{src+d}" if e & 1 else f"v_lshlrev_b32 v{b+j}, 16, v{src+d}")
        P(f"v_add_f32 v{b}, 0x3727c5ac, v{b}")
        P(f"v_sqrt_f32 v{b}, v{b}", 2)
        P(f"v_rcp_f32 v{b}, v{b}", 2)
        P(f"v_mul_f32 v{b+2}, s34, v{b+2}")
        P(f"v_mul_f32 v{b}, v{b+1}, v{b}")
        P(f"v_mul_f32 v{b+3}, s34, v{b+3}")
        P(f"v_mul_f32 v{PS+e}, s34, v{b}")
        P(f"v_fma_f32 v{PT+e}, -v{b+2}, v{b}, v{b+3}")
    for n_, oo in enumerate(sorted(range(16), key=lambda oo: max(done[(oo, 0)], done[(oo, 1)]))):
        te = TE + (n_ % 2) * 8; ob = acc(oo, 0) + 2
        cv = []
        for T in sorted((0, 1), key=lambda T: done[(oo, T)]):
            e0 = done[(oo, T)] + 2
            a = acc(oo, T); tt = te + T * 4; c = T * 4
            pr = lambda x: f"v[{x}:{x+1}]"
            z = [V(f"v_fma_f32 v{a+r}, v{a+r}, v{PS+c+r}, v{PT+c+r}", e0, need=done[(oo, T)], grp=n_,
                   pk=f"v_pk_fma_f32 {pr(a+r)}, {pr(a+r)}, {pr(PS+c+r)}, {pr(PT+c+r)}" if r % 2 == 0 else None) for r in range(4)]
            x = [V(f"v_exp_f32 v{tt+r}, {'' if o.neg else '-'}v{a+r}", e0, 2, dep=[z[r]], grp=n_) for r in range(4)]
            d = [V(f"v_fma_f32 v{tt+r}, v{tt+r}, s34, s34", e0, dep=[x[r]], grp=n_,
                   pk=f"v_pk_fma_f32 {pr(tt+r)}, {pr(tt+r)}, s[34:35], s[34:35]" if r % 2 == 0 else None) for r in range(4)]
            q = [V(f"v_rcp_f32 v{tt+r}, v{tt+r}", e0, 2, dep=[d[r]], grp=n_) for r in range(4)]
            m = [V(f"v_mul_f32 v{a+r}, v{a+r}, v{tt+r}", e0, dep=[q[r]], grp=n_,
                   pk=f"v_pk_mul_f32 {pr(a+r)}, {pr(a+r)}, {pr(tt+r)}" if r % 2 == 0 else None) for r in range(4)]
            for p in ((1, 0) if T == 0 else (0, 1)):
                cv.append(V(f"v_cvt_pk_bf16_f32 v{ob+T*2+p}, v{a+2*p}, v{a+2*p+1}", e0, dep=m[2*p:2*p+2] + cv[-1:] * (len(cv) % 2), grp=n_))
        if not o.nostore:
            stores.append(Op("st", f"buffer_store_dwordx4 v[{ob}:{ob+3}], v{vOut}, s[{sO}:{sO+3}], {['0','s36','s37','s38'][oo//4]} offen offset:{(oo%4)*1024} {o.stflag if n_ < 16 - o.nlast else o.stlast}", dep=cv, grp=n_))
    first = sorted([r for r in reads if r.tag[:2] == ("w", 0)], key=lambda r: firstuse[r.tag])
    fx = [r for r in reads if r.tag in (("x", 0, 0), ("x", 0, 1), ("x", 0, 2))]
    for op in fx[:1] + first[:2] + fx[1:2] + first[2:8] + fx[2:] + first[8:]:
        A(op.text); lq.append(op.tag); reads.remove(op)
    at = {}
    def rdy(v, i):
        if v.earliest > i or (v.need is not None and len(L) - at[v.need] - 1 < 8): return False
        return all(d.at is not None and len(L) - d.at - 1 >= (0 if v.grp < 0 and d.cost == 1 else 1) for d in v.dep)
    def pick(i, room, kind="v"):
        g0_ = valu[0].grp if valu else 0
        for v in valu:
            if v.grp > g0_ + (1 if o.look else 0): break
            if v.kind == kind and v.cost <= room and rdy(v, i): return v
            if not o.look: break
        return None
    def put(v): v.at = len(L); A(v.text); valu.remove(v)
    A(f"s_waitcnt lgkmcnt({lgwait(mf[0][3])})")
    hops = kv(o.hop)
    di = over = 0; staged = False; lastdma = -10; firststore = None; lastst = -100
    for i in range(NM):
        if i == pos[("s", 0)]: stamp(3)
        at[i] = len(L)
        D, a, b, needs, fst = mf[i]
        if not o.nomfma: A(f"v_mfma_f32_16x16x32_bf16 v[{D}:{D+3}], a[{a}:{a+3}], {r4(b)}, {'0' if fst else f'v[{D}:{D+3}]'}")
        if i in hops: walk(hops[i])
        slot = 1
        if i in bars:
            A("s_barrier"); slot += 1 + o.barpad
            if o.traj: tstamp()
        j = i + o.hoist
        if j in bars:
            if not o.hoist: L.pop(-2 if o.traj else -1)
            assert not [r.tag for r in reads if r.tag in bars[j][1]], (j, [r.tag for r in reads if r.tag in bars[j][1]])
            assert not [d.tag for d in dmas[di:] if d.tag in bars[j][0]], (j, "load not issued before its barrier", [d.tag for d in dmas[di:] if d.tag in bars[j][0]])
            nv, nl = vmwait(bars[j][0]), lgwait(bars[j][1] + (mf[i + 1][3] if o.hoist else []))
            w = " ".join(x for x in (f"vmcnt({nv})" if nv is not None else "", f"lgkmcnt({nl})" if nl is not None else "") if x)
            ts = L.pop() if o.traj and not o.hoist else None
            if w: A("s_waitcnt " + w); slot += 1
            if not o.hoist: A("s_barrier")
            if ts: L.append(ts)
        if i + 1 < NM:
            assert not [r.tag for r in reads if r.tag in mf[i + 1][3]], (i, mf[i + 1][3])
            nl = lgwait(mf[i + 1][3])
            if nl is not None: A(f"s_waitcnt lgkmcnt({nl})"); slot += 1
        if not staged and di < len(dmas) and dmas[di].earliest <= i and not salu_needed(dmas[di].sal): staged = True
        sp = (o.dspace0 if dmas[di].earliest < 0 else o.dspace if i < H[o.dlate] else o.dspace2) / 10 if di < len(dmas) else 0
        if staged and slot == 1 and i >= lastdma + sp:
            lastdma = lastdma + sp if i < lastdma + sp + 1.5 else i
            issue(dmas[di]); di += 1; staged = False
            continue
        if stores and slot == 1 and di == len(dmas) and i >= pos[("s", 0)] + o.st0 and i >= lastst + o.stsp and rdy(stores[0], i):
            A(stores.pop(0).text); vm.append(("S",)); lastst = i
            if firststore is None: firststore = i
            continue
        rd = next((r for r in reads if r.earliest <= i), None)
        if not staged and di < len(dmas) and dmas[di].earliest <= i:
            need = salu_needed(dmas[di].sal)
            vr = pick(i, 2)
            room = 3 if not (rd or vr) else 2 if not (rd and vr) and not (vr and vr.cost == 2) else 1
            while need and slot <= room: emit_salu(need.pop(0)); slot += 1
            if not need: staged = True
        slot = max(slot, 2)
        if rd and slot <= 3 and len(lq) < 15:
            A(rd.text); lq.append(rd.tag); reads.remove(rd); slot += 1
            if dl[rd.tag] - i < o.warn: print(f"; WARN late read {rd.tag} gap {i} deadline {dl[rd.tag]}", file=sys.stderr)
        while slot < 4:
            v = pick(i, 4 - slot)
            if not v: break
            put(v); slot += v.cost
        over += max(0, slot - 4)
    assert not reads and di == len(dmas)
    print(f"; leftover VALU {len(valu)} (cost {sum(v.cost for v in valu)}), overflow {over}, first store {firststore}, bars {allb}", file=sys.stderr)
    stamp(4)
    print(f"; stores left {len(stores)}; last load issued at gap {lastdma}", file=sys.stderr)
    i = 0
    while i < len(valu):
        v = valu[i]
        while stores and all(d.at is not None for d in stores[0].dep): A(stores.pop(0).text)
        if v.need is not None and not o.nomfma:
            gap = 8 - (len(L) - at[v.need] - 1)
            if gap > 0: A(f"s_nop {gap - 1}"); at[v.need] -= 8
        two = v.pk and i + 1 < len(valu) and valu[i + 1].text.split()[0] == v.text.split()[0] and not valu[i + 1].pk and o.pk
        if any(d.at == len(L) - 1 and d.cost == 2 for d in v.dep + (valu[i + 1].dep if two else [])): A("s_nop 0")
        v.at = len(L)
        if two: valu[i + 1].at = len(L); A(v.pk); i += 2
        else: A(v.text); i += 1
    for st in stores: A(st.text)
    pad(5)
    if o.stamps:
        A("s_waitcnt vmcnt(0)")
        stamp(5)
        A("s_cmp_lg_u32 s3, 0")
        A("s_cbranch_scc1 L_end")
        for s in ("s_mov_b32 s20, s74", "s_and_b32 s21, s75, 0xffff", "s_mov_b32 s22, 0x100000", "s_waitcnt lgkmcnt(0)",
                  "s_lshl_b32 s33, s2, 7", "v_mov_b32 v6, 0"): A(s)
        for i in range(tn[0]):
            A(f"v_mov_b32 v12, s{TR[i]}")
            A(f"buffer_store_dword v12, v6, s[20:23], s33 offen offset:{4*i}")
        for i in range(0 if o.traj else 6):
            base = 40 + 4 * i if i < 3 else 80 + 4 * (i - 3)
            for jx in range(4): A(f"v_mov_b32 v{12+jx}, s{base+jx}")
            A(f"buffer_store_dwordx4 v[12:15], v6, s[20:23], s33 offen offset:{16*i}")
            A("s_nop 1")
    L.append("L_end:")
    A("s_endpgm")
    A(".fill 2048, 4, 0xbf810000")
    if o.abl:
        i0 = next(i for i, x in enumerate(L) if "v_mfma" in x) + 200
        drop = {"x": "ds_read_b128", "w": "ds_read_b64_tr", "e": ("v_exp", "v_rcp"), "v": ("v_exp", "v_rcp", "v_fma", "v_mul", "v_cvt"), "d": "buffer_load_dwordx4", "s": "buffer_store_dwordx4 v[1", "t": "buffer_store_dwordx4 v[2"}
        pre_ = tuple(sum([[drop[c]] if isinstance(drop[c], str) else list(drop[c]) for c in o.abl], []))
        L = [x for i, x in enumerate(L) if i < i0 or not x.strip().startswith(pre_) or "s[20:23]" in x]
    if not o.nomfma and not o.abl: check_hazards(L)
    if NST: L = insert_stubs(L, NST, o.ioff)
    return HEADER + f"; @launch grid=(256,1,1) block=(256,1,1) lds={LDS}\n" + \
        '.amdgcn_target "amdgcn-amd-amdhsa--gfx950"\n.text\n' + \
        f".globl {KN}\n.p2align 12\n.p2align 8\n.type {KN},@function\n" + "\n".join(L) + "\n" + \
        f""".section .rodata,"a"
.p2align 6
.amdhsa_kernel {KN}
  .amdhsa_next_free_vgpr {256 + 24 * NW + (8 * NL if o.outord else 0)}
  .amdhsa_next_free_sgpr 102
  .amdhsa_accum_offset 256
  .amdhsa_group_segment_fixed_size 0
  .amdhsa_kernarg_size 72
  .amdhsa_user_sgpr_count 2
  .amdhsa_user_sgpr_kernarg_segment_ptr 1
  .amdhsa_system_sgpr_workgroup_id_x 1
  .amdhsa_float_denorm_mode_32 3
.end_amdhsa_kernel
"""

def insert_stubs(L, n, base):
    import subprocess, tempfile
    txt = '.amdgcn_target "amdgcn-amd-amdhsa--gfx950"\n.text\n' + "\n".join(L) + "\n" + "".join(f"L_stub{k}:\n" for k in range(n))
    d = tempfile.mkdtemp()
    open(d + "/a.s", "w").write(txt)
    subprocess.check_call(["clang", "-x", "assembler", "-target", "amdgcn-amd-amdhsa", "-mcpu=gfx950", "-c", d + "/a.s", "-o", d + "/a.o"])
    dis = subprocess.check_output(["llvm-objdump", "-d", "--mcpu=gfx950", d + "/a.o"], text=True)
    addrs = [int(m.group(1), 16) for m in re.finditer(r"// ([0-9A-F]{12}):", dis)]
    amap = dict(zip([i for i, x in enumerate(L) if x.startswith("    ") and not x.strip().startswith(".")], addrs))
    out, k = [], 0
    for i, x in enumerate(L):
        if k < n and i in amap and base + amap[i] + 4 * k >= (base // 0x1000 + 1 + k) * 0x1000:
            out.append(f"L_stub{k}:"); out.append(f"    s_cbranch_vccnz L_back{k // 4}"); k += 1
        out.append(x)
    assert k == n, k
    return out

if __name__ == "__main__":
    ap = argparse.ArgumentParser()
    ap.add_argument("out")
    for f in ("traj", "stamps", "nomfma", "nodma", "nostore"): ap.add_argument("--" + f, action="store_true")
    for k, v in dict(stlast="sc1", abl="", hop="", pad="", stflag="sc1 nt", porder="w0,x0.01,I,x0.23,S,A,x1,L,w1.01,B|w1.2345,x2,w2", g0="x0.01",
                     eb="8:x0.23,32:x1.01,56:x1.23+L", bpos="0:12", fh="5,7,9,11,13,15", place="r,r,0,1,2,3,4,5", qs="0,4",
                     xi="", xl="1:0,2:0,3:0,4:1,5:1,6:1,7:1").items(): ap.add_argument("--" + k, default=v)
    for k, v in dict(nlast=1, early=1, hoist=1, neg=1, pland=0, swapend=1, barpad=0, st0=200, stsp=20, dlate=14, otouch=-1, n1=10, nst=6, ioff=0x2300, b0=5, b1=11, b2=4, xlead=16, ylead=30, dspace=58, dspace0=40, dspace2=70,
                     warn=8, holdst=1, look=1, pk=1, tend=1, outord=1).items(): ap.add_argument("--" + k, type=int, default=v)
    o = ap.parse_args()
    open(o.out, "w").write(gen(o))
```

```python
import sys, argparse, re
from hazard import check_hazards

KN = "standalone__batchnorm__sampling_kernel"
HEADER = """; conv1d(K=3) as MFMA GEMM + folded BatchNorm + SiLU.  Generated by tools/gen4.py (hand-written generator).
; x and w reach LDS by buffer_load ... lds (rings of 4 x 16 KB and 4 x 24 KB), published by vmcnt + s_barrier.
"""
WB = 65536
WB2 = WB + 8192
LDS = WB + 4 * 24576
PL = 3 * 16384
sX, sW, sO, sP = 8, 12, 16, 20
vXa, vXb, vW = 1, 2, 3
vDW, vDX, vOut, vPar = 7, 8, 10, 11
vXa2, vXb2, vXa3, vXb3 = 12, 13, 14, 15
TE, OB = 16, 32
vPl, vDump, vI = 37, 38, 39
PS, PT, PTMP = 40, 48, 56
XR, ACC = 64, 128
def acc(o, T): return ACC + (o * 2 + T) * 4
def wreg(slot, k, T): return slot * 24 + (k * 2 + T) * 4
def xr(b, l): return XR + b * 32 + l * 4
def r4(x): return f"v[{x}:{x+3}]" if x < 256 else f"a[{x-256}:{x-253}]"
def kv(s): return dict((int(a), int(b)) for a, b in (x.split(":") for x in s.split(",") if x))

class Op:
    def __init__(self, kind, text, tag=None, earliest=0, need=None, cost=1, sal=(), dep=(), grp=0, pk=None):
        self.kind, self.text, self.tag, self.earliest, self.need, self.cost = kind, text, tag, earliest, need, cost
        self.sal, self.dep, self.grp, self.pk, self.at = list(sal), list(dep), grp, pk, None

def gen(o):
    N1 = o.n1; NL = 16 - N1; NU = N1 + 8
    fh = [int(x) for x in o.fh.split(",")]
    fown = fh[-1] < 2 * N1 - 2
    assert len(fh) == NL
    hs = {2 * t: t + 1 for t in range(N1 - 1)}
    for l, h in enumerate(fh): assert h not in hs; hs[h] = N1 + l
    SEQ = [0] + [hs[h] for h in sorted(hs)]
    HS = sorted(set(hs) | {2 * N1 - 2})
    om = SEQ.index
    def wslot(w): c = SEQ[w]; return c % 2 if c < N1 else 0 if c == 15 and not fown else c - N1 + 2
    place = o.place.split(",")
    JS = 8192 if NL == 8 else NL * 1024
    WPOS = [WB2, WB + 24576, WB + 49152] if NL == 8 else [WB + 2 * JS * j for j in range(8)]
    XBASE = {q: (q % 4) * 16384 for q in range(N1)}
    XPREV, nr = {}, N1
    for p, w in enumerate(place):
        if w == "r": XBASE[N1 + p] = (nr % 4) * 16384; XPREV[N1 + p] = max(q for q in range(N1 + p) if XBASE.get(q) == XBASE[N1 + p]); nr += 1
        else: XBASE[N1 + p] = WPOS[int(w)]
    B2 = WPOS[0]; B3 = B2 + 61440
    L = []
    A = lambda s: L.append("    " + s)
    def pad(i):
        if o.pad and int(o.pad.split(":")[0]) == i:
            n = int(float(o.pad.split(":")[1]) * 100)
            if i == 5: A("s_waitcnt vmcnt(0)")
            L.append(f"L_pad{i}:")
            for s in ("s_sleep 1", "s_memrealtime s[96:97]", "s_waitcnt lgkmcnt(0)", "s_sub_u32 s96, s96, s98",
                      f"s_cmp_lt_u32 s96, {n}", f"s_cbranch_scc1 L_pad{i}"): A(s)
    TR = list(range(40, 52, 2)) + list(range(80, 102, 2)) + [64, 66, 68, 70, 28, 30, 72, 24, 26, 62]
    tn = [0]
    def tstamp(): A(f"s_memtime s[{TR[tn[0]]}:{TR[tn[0]]+1}]"); tn[0] += 1
    def stamp(i):
        if o.pad and i == 0: A("s_memrealtime s[98:99]")
        if i != 5: pad(i)
        if o.traj:
            if i in (0, 2, 4, 5): tstamp()
        elif o.stamps:
            A(f"s_memtime s[{40+2*i}:{41+2*i}]")
            A(f"s_memrealtime s[{80+2*i}:{81+2*i}]")
    L.append(KN + ":")
    stamp(0)
    A("s_load_dwordx4 s[28:31], s[0:1], 0")
    A("s_load_dwordx8 s[64:71], s[0:1], 16")
    A("s_load_dwordx2 s[72:73], s[0:1], 48")
    if o.stamps: A("s_load_dwordx2 s[74:75], s[0:1], 64")
    A("s_cmp_ge_u32 s2, 256")
    A("s_cbranch_scc1 L_end")
    A("v_lshrrev_b32 v56, 6, v0")
    A("v_and_b32 v0, 63, v0")
    A("v_readfirstlane_b32 s3, v56")
    A("s_and_b32 s4, s2, 7")
    A("s_lshr_b32 s5, s2, 3")
    A("s_and_b32 s6, s5, 3")
    A("s_lshr_b32 s33, s5, 2")
    A("s_lshl_b32 s7, s4, 3")
    A("s_add_u32 s7, s7, s33")
    A("s_lshl_b32 s7, s7, 18")
    A("s_lshl_b32 s6, s6, 8")
    if o.rot == 1:
        A("s_lshl_b32 s59, s4, 16")
        A("s_lshl_b32 s58, s4, 7")
    else:
        if o.rot == 3:
            A("s_and_b32 s33, s4, 6")
            A("s_add_u32 s4, s4, s33")
        A("s_lshl_b32 s59, s4, 15")
        A("s_lshr_b32 s58, s4, 1")
        A("s_lshl_b32 s58, s58, 7")
    A("v_lshrrev_b32 v56, 4, v0")
    A("v_and_b32 v57, 15, v0")
    A("v_and_b32 v58, 1, v56")
    A("v_lshlrev_b32 v58, 2, v58")
    A("v_or_b32 v58, s3, v58")
    A("v_lshlrev_b32 v58, 1, v58")
    A("v_xor_b32 v58, v58, v57")
    A("v_lshlrev_b32 v58, 4, v58")
    A("v_lshl_add_u32 v58, v56, 13, v58")
    A("s_lshl_b32 s33, s3, 10")
    A("s_add_u32 s34, s33, s6")
    A(f"v_add_u32 v{vDW}, s34, v58")
    A(f"s_add_u32 s60, s33, {WB}")
    A("s_and_b32 s35, s3, 1")
    A("s_lshr_b32 s36, s3, 1")
    A("v_lshrrev_b32 v59, 3, v0")
    A("v_and_b32 v60, 7, v0")
    A("v_lshrrev_b32 v61, 1, v59")
    A("s_lshl_b32 s37, s35, 2")
    A("v_add_u32 v61, s37, v61")
    A("v_xor_b32 v61, v61, v60")
    A("v_lshlrev_b32 v61, 4, v61")
    A("v_lshl_add_u32 v61, v59, 14, v61")
    A("s_lshl_b32 s37, s35, 17")
    A("s_add_u32 s37, s37, s7")
    A("s_lshl_b32 s38, s36, 10")
    A("s_add_u32 s39, s37, s38")
    A(f"v_add_u32 v{vDX}, s39, v61")
    A("s_lshl_b32 s61, s35, 13")
    A("s_add_u32 s61, s61, s38")
    A(f"s_mov_b32 s{sX+2}, 0x1000000")
    A(f"s_mov_b32 s{sX+3}, 0x20000")
    A(f"s_mov_b32 s{sW+2}, 0x180000")
    A(f"s_mov_b32 s{sW+3}, 0x20000")
    A("s_getpc_b64 s[56:57]")
    A("s_lshl_b32 s39, s5, 2")
    A("s_add_u32 s39, s39, s3")
    A("s_lshl_b32 s39, s39, 8")
    A(f"v_and_b32 v{vI}, 1, v0")
    A(f"v_lshl_add_u32 v{vI}, v{vI}, 7, s39")
    def setup1():
        A(f"s_mov_b32 s32, {B2}")
        A("v_lshrrev_b32 v58, 1, v57")
        A("v_xor_b32 v58, v58, v56")
        if o.rot != 1:
            A("s_and_b32 s33, s4, 1")
            A("s_lshl_b32 s33, s33, 2")
            A("v_xor_b32 v58, s33, v58")
        A("v_lshlrev_b32 v58, 4, v58")
        A("v_and_b32 v59, 7, v57")
        A("v_lshl_add_u32 v58, v59, 7, v58")
        A("v_lshrrev_b32 v59, 3, v57")
        A(f"v_lshl_add_u32 v{vXa}, v59, 13, v58")
        A(f"v_xor_b32 v{vXb}, 64, v{vXa}")
        A(f"v_mul_u32_u24 v59, {JS}, v59")
        A(f"v_add3_u32 v{vXa2}, v59, v58, s32")
        A(f"v_xor_b32 v{vXb2}, 64, v{vXa2}")
        A(f"v_add_u32 v{vXa3}, 61440, v{vXa2}")
        A(f"v_add_u32 v{vXb3}, 61440, v{vXb2}")
        A(f"s_mul_i32 s32, s35, {JS}")
        A("s_add_u32 s32, s32, s38")
        A("v_lshrrev_b32 v58, 2, v57")
        A("v_and_b32 v59, 3, v0")
        A("v_and_b32 v62, 1, v56")
        A("v_lshl_add_u32 v62, v62, 2, v58")
        A("v_lshlrev_b32 v62, 1, v62")
        A("s_lshl_b32 s34, s3, 2")
        A("v_add_u32 v63, s34, v59")
        A("v_xor_b32 v63, v63, v62")
        A("v_lshlrev_b32 v63, 4, v63")
        A("v_lshl_add_u32 v63, v58, 10, v63")
        A("v_lshl_add_u32 v63, v56, 8, v63")
        A(f"v_add_u32 v{vW}, {WB}, v63")
        A(f"v_xor_b32 v{vW+1}, 8, v{vW}")
        A(f"v_add_u32 v{vW+2}, 49152, v{vW}")
        A(f"v_add_u32 v{vW+3}, 49152, v{vW+1}")
        A("s_lshl_b32 s33, s3, 6")
        A(f"v_lshl_add_u32 v{vPl}, v56, 4, s33")
        A("s_add_u32 s33, s6, s7")
        A(f"v_lshl_add_u32 v58, v57, 14, v{vPl}")
        A(f"v_add_u32 v{vOut}, s33, v58")
        A(f"s_mov_b32 s{sO+2}, 0x1000000")
        A(f"s_mov_b32 s{sO+3}, 0x20000")
        A(f"s_mov_b32 s34, {'0xbfb8aa3b' if o.neg else '0x3fb8aa3b'}")
        A("s_mov_b32 s35, s34")
        A("s_mov_b32 s36, 4096")
        A("s_mov_b32 s37, 8192")
        A("s_mov_b32 s38, 12288")
        A(f"s_mov_b32 s{sP+2}, 1024")
        A(f"s_mov_b32 s{sP+3}, 0x20000")
        A(f"v_lshlrev_b32 v{vPar}, 2, v0")
        A("s_lshl_b32 s39, s3, 8")
    if o.early: setup1()
    A("s_waitcnt lgkmcnt(0)")
    stamp(1)
    A(f"s_mov_b32 s{sX}, s28")
    A(f"s_and_b32 s{sX+1}, s29, 0xffff")
    A(f"s_mov_b32 s{sW}, s30")
    A(f"s_and_b32 s{sW+1}, s31, 0xffff")

    vm, lq = [], []
    tmpi = [0]
    def stmp(): tmpi[0] += 1; return 52 + tmpi[0] % 4
    def items(tok):
        r = []
        n, _, part = tok[1:].partition(".")
        if tok[0] == "w":
            w = int(n)
            for grp in ([int(c) for c in part] if part else range(6)):
                st = stmp()
                r.append(Op("d", f"buffer_load_dwordx4 v{vDW}, s[{sW}:{sW+3}], s{st} offen lds", ("W", w, grp // 2),
                            sal=[f"s_add_u32 m0, s60, {(w % 4) * 24576 + grp * 4096}",
                                 f"s_xor_b32 s{st}, s59, {SEQ[w] * 32768 + (grp // 2) * 524288 + (grp % 2) * 4096}"]))
        elif tok[0] == "x":
            q = int(n)
            for i in ([int(c) for c in part] if part else range(4 if q < N1 else NL // 2)):
                if q >= N1 or i % 2 == 0 or not r: st = stmp()
                if q < N1:
                    r.append(Op("d", f"buffer_load_dwordx4 v{vDX}, s[{sX}:{sX+3}], s{st} offen offset:{(i&1)*2048} nt lds", ("X", q, i),
                                sal=[f"s_add_u32 m0, s61, {XBASE[q] + (i >> 1) * 4096}", f"s_xor_b32 s{st}, s58, {(q >> 1) * 128 + (q & 1) * 8192 + (i >> 1) * 4096}"]))
                else:
                    r.append(Op("d", f"buffer_load_dwordx4 v{vDX}, s[{sX}:{sX+3}], s{st} offen nt lds", ("X", q, i),
                                sal=[f"s_add_u32 m0, s{61 if XBASE[q] < WB else 32}, {XBASE[q] + i * 2048}", f"s_xor_b32 s{st}, s58, {(q - N1) * 2048 + (N1 // 2 + i) * 128}"]))
        elif tok == "I":
            r.append(Op("d", f"global_load_dword v{vDump}, v{vI}, s[56:57]", ("F",)))
        elif tok == "O":
            r.append(Op("d", f"buffer_load_dword v{vDump}, off, s[{sO}:{sO+3}], s7 nt", ("F",)))
        elif tok == "L":
            r.append(Op("d", f"buffer_load_dword v{vPar}, s[{sP}:{sP+3}], s6 offen lds", ("P",), sal=[f"s_add_u32 m0, s39, {PL}"]))
        return r
    have = {}
    def salu_needed(sal): return [s for s in sal if have.get(s.split()[1]) != s]
    def emit_salu(s): A(s); have[s.split()[1]] = s
    def issue(op):
        if o.nodma and "lds" in op.text: return
        A(op.text); vm.append(op.tag)
    NST = o.nst
    def walk(rnd):
        if not NST: return
        A("s_mov_b64 vcc, 1")
        for k in range(4 * rnd, min(NST, 4 * rnd + 4)):
            A(f"s_cmp_eq_u32 s3, {k - 4 * rnd}")
            A(f"s_cbranch_scc1 L_stub{k}")
        L.append(f"L_back{rnd}:")
        A("s_mov_b64 vcc, 0")
    def setup():
        if not o.early: setup1()
        A(f"s_mov_b32 s{sO}, s72")
        A(f"s_and_b32 s{sO+1}, s73, 0xffff")
        for i in range(1, 4):
            A(f"s_cmp_eq_u32 s3, {i}")
            A(f"s_cselect_b64 s[64:65], s[{64+2*i}:{65+2*i}], s[64:65]")
        A(f"s_mov_b32 s{sP}, s64")
        A(f"s_and_b32 s{sP+1}, s65, 0xffff")
    pre, _, post = o.porder.partition("|")
    for tok in filter(None, pre.split(",")):
        if tok == "S": setup()
        elif tok in "ABC": walk("ABC".index(tok))
        else:
            for op in items(tok):
                for s in salu_needed(op.sal): emit_salu(s)
                if L[-1].split()[1].startswith("m0"): A("s_nop 0")
                issue(op)
    def qwait(q, tags, mx):
        idx = max([i for i, t in enumerate(q) if t in tags], default=-1)
        if idx < 0: return None
        n = len(q) - 1 - idx
        del q[:idx + 1]
        assert n <= mx, n
        return n
    vmwait = lambda tags: qwait(vm, tags, 63)
    lgwait = lambda tags: qwait(lq, tags, 15)
    def tagsof(tok):
        if tok == "L": return [("P",)]
        q, _, part = tok[1:].partition(".")
        if tok[0] == "w": return [("W", int(q), int(c)) for c in part]
        return [("X", int(q), int(c)) for c in (part or "0123")]
    g0 = sum([tagsof(t) for t in o.g0.split(",") if t], [])
    n = vmwait([("W", 0, k) for k in range(3)] + g0)
    if n is not None: A(f"s_waitcnt vmcnt({n})")
    A("s_barrier")
    stamp(2)

    mf, pos, touched = [], {}, set()
    def add(oo, T, c, k, breg, xtag):
        mf.append((acc(oo, T), wreg(wslot(om(c)), k, T), breg, [xtag, ("w", om(c), k, T)], (oo, T) not in touched))
        touched.add((oo, T))
    def p1x(r, t=0): return 256 + 48 + 4 * r if t == 1 and o.t1 else xr(1, r & 7)
    for t in range(N1):
        if t == 1 and o.t1:
            for k in (1, 0, 2):
                for n_, r in enumerate(r for r in range(16) if 0 <= r + 1 - k <= 15):
                    for T in ((0, 1) if n_ % 2 == 0 else (1, 0)): add(r + 1 - k, T, t, k, p1x(r, t), ("x", t, r))
            continue
        for oo in range(16):
            for ti, T in enumerate((0, 1) if oo % 2 == 0 else (1, 0)):
                for k in ((0, 1, 2) if ti == 0 else (2, 1, 0)):
                    r = oo + k - 1
                    if 0 <= r <= 15: add(oo, T, t, k, p1x(r), ("x", t, r))
            pos[("o", 16 * t + oo)] = len(mf) - 1
    chains, T = [], 0
    NB = 4 if o.outord else 2
    NW = NL + 1 + fown
    def yr(s_, l):
        b = s_ % NB
        return xr(b, l) if b < 2 and not (o.outord and b == 1) else xr(1, l) if (b == 2 and o.outord) else 256 + 24 * NW + (b // 2) * NL * 4 + l * 4
    if o.outord:
        for n_, oo in enumerate(list(range(14)) + ([15, 14] if o.swapend else [14, 15])):
            for ti, T in enumerate((0, 1) if n_ % 2 == 0 else (1, 0)):
                chains += [(oo + k - 1, k, T) for k in ((0, 1, 2) if ti == 0 else (2, 1, 0)) if 0 <= oo + k - 1 <= 15]
    else:
        for s in range(14):
            for k in (2, 1, 0):
                if 0 <= s + 1 - k <= 15: chains += [(s, k, T), (s, k, 1 - T)]; T = 1 - T
        chains += [(14, 2, T), (14, 2, 1 - T)]
        for g1, g2 in (((14, 1), (15, 2)), ((14, 0), (15, 1))):
            chains += [g1 + (T,), g2 + (T,), g1 + (1 - T,), g2 + (1 - T,)] if o.tend else [g1 + (T,), g1 + (1 - T,), g2 + (1 - T,), g2 + (T,)]
    done = {}
    for n_, (s, k, T) in enumerate(chains):
        pos.setdefault(("s", s + 1 - k if o.outord else s), len(mf))
        for l in (range(NL) if n_ % 2 == 0 else range(NL - 1, -1, -1)): add(s + 1 - k, T, N1 + l, k, yr(s, l), ("y", s, l))
        done[(s + 1 - k, T)] = len(mf) - 1
    NM = len(mf)
    assert NM == 1472
    firstuse, lastuse = {}, {}
    for i, m in enumerate(mf):
        for tg in m[3]: firstuse.setdefault(tg, i); lastuse[tg] = i
    bp = kv(o.bpos)
    H = {h: bp[h] - 1000 if bp.get(h, 0) >= 1000 else pos[("o", bp.get(h, 16 * (h // 2) + (o.b1 if h % 2 else o.b0)))] for h in HS}
    Q = [pos[("s", int(s))] + o.b2 for s in o.qs.split(",")]
    allb = [H[h] for h in HS] + Q
    assert allb == sorted(allb)
    nxt = lambda g: min(b for b in allb if b > g)
    wtags = lambda w: [("w", w, k, T) for k in range(3) for T in range(2)]
    def xtags(q):
        if q < N1: return [("x", t, r) for t in (q & ~1, q | 1) for r in range(8 * (q & 1), 8 * (q & 1) + 8)]
        return [("y", s, l) for s in (2 * (q - N1), 2 * (q - N1) + 1) for l in range(NL)]
    land, issue_at, prev = {}, {}, {}
    early = set(x.partition("@")[0].partition(".")[0] for x in (pre + "," + post).split(","))
    hof = {c: h for h, c in hs.items()}
    for w in range(16):
        for k in range(3): land[("W", w, k)] = -1 if w == 0 else H[hof[SEQ[w]]]
    xl = kv(o.xl)
    for q in range(NU):
        for i in range(4): land[("X", q, i)] = -1 if q == 0 else H[2 * q - 2] if q <= N1 else Q[xl[q - N1]]
    land[("P",)] = H[o.pland]
    for t in g0: land[t] = -1
    E = []
    for x in filter(None, o.eb.split(",")):
        g, _, toks = x.partition(":")
        E.append(int(g))
        for t in filter(None, toks.split("+")):
            for tg in tagsof(t): land[tg] = int(g)
    wland = lambda w: max(land[("W", w, k)] for k in range(3))
    for w in range(16):
        if w >= 4: issue_at[f"w{w}"] = nxt(wland(w - 4)); prev[f"w{w}"] = wtags(w - 4)
        elif f"w{w}" not in early: issue_at[f"w{w}"] = allb[0]; prev[f"w{w}"] = []
    for q in range(3, N1): issue_at[f"x{q}"] = H[2 * (q - 3)]; prev[f"x{q}"] = xtags(q - 4) if q >= 4 else []
    xi = kv(o.xi)
    for p in range(8):
        q = N1 + p
        if q in XPREV:
            pq = XPREV[q]
            g = H[2 * pq + 2] if 2 * pq + 2 in H else Q[0] if pq <= N1 else None
            prev[f"x{q}"] = xtags(pq)
        else:
            ws = [w for w in range(12, 16) if WB + (w % 4) * 24576 < XBASE[q] + 2 * JS and XBASE[q] < WB + (w % 4 + 1) * 24576]
            g = max(nxt(wland(w)) for w in ws)
            prev[f"x{q}"] = sum([wtags(w) for w in ws], [])
        issue_at[f"x{q}"] = max(g, allb[len(HS) + xi[p]] if p in xi else g)
    ptags = [("p", i) for i in range(4)]
    prel = issue_at["x3"] = nxt(land[("P",)]); prev["x3"] = ptags
    bars = {g: ([t for t, b in land.items() if b == g], sum([prev[k] for k, b in issue_at.items() if b == g], [])) for g in allb + E}
    dmas = []
    for tok in filter(None, post.split(",")):
        for op in items(tok): op.earliest = -1; dmas.append(op)
    for g in allb:
        for k in sorted([k for k, b in issue_at.items() if b == g], key=lambda k: land[(k[0].upper(), int(k[1:]), 0)]):
            for op in items(k): op.earliest = g; dmas.append(op)
        if o.otouch >= 0 and g == H[o.otouch]:
            for op in items("O"): op.earliest = g; dmas.append(op)
    reads = []
    def rd_x(tag, dst, q, off, kk, e):
        b = XBASE[q]
        v, b = ((vXa, vXb)[kk], b) if b < WB else ((vXa2, vXb2)[kk], b - B2) if b < B3 else ((vXa3, vXb3)[kk], b - B3)
        reads.append(Op("r", f"ds_read_b128 {r4(dst)}, v{v} offset:{b + off}", tag, max(e, land[("X", q, off // 2048)])))
    for w in range(16):
        for k in (1, 2, 0):
            for T in (0, 1):
                for h in (0, 1):
                    r = wreg(wslot(w), k, T) + 2 * h
                    reads.append(Op("t", f"ds_read_b64_tr_b16 a[{r}:{r+1}], v{vW + T + (2 if w % 4 >= 2 else 0)} offset:{(w%2)*24576 + k*8192 + h*4096}",
                                    ("w", w, k, T), land[("W", w, k)]))
    for t in range(N1):
        for r in range(16):
            pv = None if t == 1 and o.t1 else ("x", t, r - 8) if r >= 8 else ("x", t - 1 - (t == 2 and o.t1), r + 8)
            e = max(lastuse.get(pv, -1), firstuse[("x", t, r)] - o.xlead)
            rd_x(("x", t, r), p1x(r, t), (t & ~1) + (r >> 3), (r & 7) * 1024, t & 1, e)
    for s in range(16):
        for l in range(NL):
            e = max(firstuse[("y", s, l)] - o.ylead, lastuse.get(("y", s - NB, l), -1))
            if xr(1, 0) <= yr(s, l) < 256: e = max(e, lastuse[("x", N1 - 1, 8 + l)])
            rd_x(("y", s, l), yr(s, l), N1 + (s >> 1), (s & 1) * 1024 + (l >> 1) * 2048, l & 1, e)
    for i in range(4):
        reads.append(Op("r", f"ds_read_b128 v[{16+4*i}:{19+4*i}], v{vPl} offset:{PL + i * 256}", ("p", i), land[("P",)]))
        firstuse[("p", i)] = NM
    dl = dict(firstuse)
    for g, (_, tl) in bars.items():
        for tg in tl: dl[tg] = min(dl[tg], g + 1 - o.hoist)
    reads.sort(key=lambda r: (dl[r.tag], r.earliest))
    valu, stores = [], []
    def V(txt, e, cost=1, kind="v", need=None, dep=(), grp=0, pk=None):
        valu.append(Op(kind, txt, None, e, need, cost, dep=dep, grp=grp, pk=pk)); return valu[-1]
    last = None
    def P(txt, cost=1):
        nonlocal last
        last = V(txt, prel, cost, dep=[last] if last else [], grp=-1)
    for e in range(8):
        d = e >> 1; b = PTMP + (e % 2) * 4
        for j, src in enumerate((20, 24, 16, 28)):
            P(f"v_and_b32 v{b+j}, 0xffff0000, v{src+d}" if e & 1 else f"v_lshlrev_b32 v{b+j}, 16, v{src+d}")
        P(f"v_add_f32 v{b}, 0x3727c5ac, v{b}")
        P(f"v_sqrt_f32 v{b}, v{b}", 2)
        P(f"v_rcp_f32 v{b}, v{b}", 2)
        P(f"v_mul_f32 v{b+2}, s34, v{b+2}")
        P(f"v_mul_f32 v{b}, v{b+1}, v{b}")
        P(f"v_mul_f32 v{b+3}, s34, v{b+3}")
        P(f"v_mul_f32 v{PS+e}, s34, v{b}")
        P(f"v_fma_f32 v{PT+e}, -v{b+2}, v{b}, v{b+3}")
    for n_, oo in enumerate(sorted(range(16), key=lambda oo: max(done[(oo, 0)], done[(oo, 1)]))):
        te = TE + (n_ % 2) * 8; ob = acc(oo, 0) + 2
        cv = []
        for T in sorted((0, 1), key=lambda T: done[(oo, T)]):
            e0 = done[(oo, T)] + 2
            a = acc(oo, T); tt = te + T * 4; c = T * 4
            pr = lambda x: f"v[{x}:{x+1}]"
            def stage(fs, fp, dep, need=None):
                if not o.pkall:
                    return [V(fs(r), e0, need=need, dep=dep[r:r+1], grp=n_, pk=fp(r) if r % 2 == 0 else None) for r in range(4)]
                p = [V(fp(r), e0, 2, need=need, dep=dep[r:r+2], grp=n_) for r in (0, 2)]
                for v in p: v.trans = False
                return [p[0], p[0], p[1], p[1]]
            z = stage(lambda r: f"v_fma_f32 v{a+r}, v{a+r}, v{PS+c+r}, v{PT+c+r}", lambda r: f"v_pk_fma_f32 {pr(a+r)}, {pr(a+r)}, {pr(PS+c+r)}, {pr(PT+c+r)}", [], done[(oo, T)])
            x = [V(f"v_exp_f32 v{tt+r}, {'' if o.neg else '-'}v{a+r}", e0, 2, dep=[z[r]], grp=n_) for r in range(4)]
            d = stage(lambda r: f"v_fma_f32 v{tt+r}, v{tt+r}, s34, s34", lambda r: f"v_pk_fma_f32 {pr(tt+r)}, {pr(tt+r)}, s[34:35], s[34:35]", x)
            q = [V(f"v_rcp_f32 v{tt+r}, v{tt+r}", e0, 2, dep=[d[r]], grp=n_) for r in range(4)]
            m = stage(lambda r: f"v_mul_f32 v{a+r}, v{a+r}, v{tt+r}", lambda r: f"v_pk_mul_f32 {pr(a+r)}, {pr(a+r)}, {pr(tt+r)}", q)
            for p in ((1, 0) if T == 0 else (0, 1)):
                cv.append(V(f"v_cvt_pk_bf16_f32 v{ob+T*2+p}, v{a+2*p}, v{a+2*p+1}", e0, dep=m[2*p:2*p+2] + cv[-1:] * (len(cv) % 2), grp=n_))
        if not o.nostore:
            stores.append(Op("st", f"buffer_store_dwordx4 v[{ob}:{ob+3}], v{vOut}, s[{sO}:{sO+3}], {['0','s36','s37','s38'][oo//4]} offen offset:{(oo%4)*1024} {o.stflag if n_ < 16 - o.nlast else o.stlast}", dep=cv, grp=n_))
    first = sorted([r for r in reads if r.tag[:2] == ("w", 0)], key=lambda r: firstuse[r.tag])
    fx = [r for r in reads if r.tag in (("x", 0, 0), ("x", 0, 1), ("x", 0, 2))]
    for op in fx[:1] + first[:2] + fx[1:2] + first[2:8] + fx[2:] + first[8:]:
        A(op.text); lq.append(op.tag); reads.remove(op)
    at = {}
    def rdy(v, i):
        if v.earliest > i or (v.need is not None and len(L) - at[v.need] - 1 < 8): return False
        return all(d.at is not None and len(L) - d.at - 1 >= (0 if v.grp < 0 and d.cost == 1 else 1) for d in v.dep)
    def pick(i, room, kind="v"):
        g0_ = valu[0].grp if valu else 0
        for v in valu:
            if v.grp > g0_ + (1 if o.look else 0): break
            if v.kind == kind and v.cost <= room and rdy(v, i): return v
            if not o.look: break
        return None
    def put(v): v.at = len(L); A(v.text); valu.remove(v)
    A(f"s_waitcnt lgkmcnt({lgwait(mf[0][3])})")
    hops = kv(o.hop)
    di = over = 0; staged = False; lastdma = -10; firststore = None; lastst = -100
    for i in range(NM):
        if i == pos[("s", 0)]: stamp(3)
        at[i] = len(L)
        D, a, b, needs, fst = mf[i]
        if not o.nomfma: A(f"v_mfma_f32_16x16x32_bf16 v[{D}:{D+3}], a[{a}:{a+3}], {r4(b)}, {'0' if fst else f'v[{D}:{D+3}]'}")
        if i in hops: walk(hops[i])
        slot = 1
        if i in bars:
            A("s_barrier"); slot += 1 + o.barpad
            if o.traj: tstamp()
        j = i + o.hoist
        if j in bars:
            if not o.hoist: L.pop(-2 if o.traj else -1)
            assert not [r.tag for r in reads if r.tag in bars[j][1]], (j, [r.tag for r in reads if r.tag in bars[j][1]])
            assert not [d.tag for d in dmas[di:] if d.tag in bars[j][0]], (j, "load not issued before its barrier", [d.tag for d in dmas[di:] if d.tag in bars[j][0]])
            nv, nl = vmwait(bars[j][0]), lgwait(bars[j][1] + (mf[i + 1][3] if o.hoist else []))
            w = " ".join(x for x in (f"vmcnt({nv})" if nv is not None else "", f"lgkmcnt({nl})" if nl is not None else "") if x)
            ts = L.pop() if o.traj and not o.hoist else None
            if w: A("s_waitcnt " + w); slot += 1
            if not o.hoist: A("s_barrier")
            if ts: L.append(ts)
        if i + 1 < NM:
            assert not [r.tag for r in reads if r.tag in mf[i + 1][3]], (i, mf[i + 1][3])
            nl = lgwait(mf[i + 1][3])
            if nl is not None: A(f"s_waitcnt lgkmcnt({nl})"); slot += 1
        if not staged and di < len(dmas) and dmas[di].earliest <= i and not salu_needed(dmas[di].sal): staged = True
        sp = (o.dspace0 if dmas[di].earliest < 0 else o.dspace if i < H[o.dlate] else o.dspace2) / 10 if di < len(dmas) else 0
        if o.dsched and di < len(dmas): sp = [v for g, v in sorted(kv(o.dsched).items()) if g <= i][-1] / 10
        if staged and slot == 1 and i >= lastdma + sp:
            lastdma = lastdma + sp if i < lastdma + sp + 1.5 else i
            issue(dmas[di]); di += 1; staged = False
            continue
        if stores and slot == 1 and di == len(dmas) and i >= pos[("s", 0)] + o.st0 and i >= lastst + o.stsp and rdy(stores[0], i):
            A(stores.pop(0).text); vm.append(("S",)); lastst = i
            if firststore is None: firststore = i
            continue
        rd = next((r for r in reads if r.earliest <= i), None)
        if not staged and di < len(dmas) and dmas[di].earliest <= i:
            need = salu_needed(dmas[di].sal)
            vr = pick(i, 2)
            room = 3 if not (rd or vr) else 2 if not (rd and vr) and not (vr and vr.cost == 2) else 1
            while need and slot <= room: emit_salu(need.pop(0)); slot += 1
            if not need: staged = True
        slot = max(slot, 2)
        if rd and slot <= 3 and len(lq) < 15:
            A(rd.text); lq.append(rd.tag); reads.remove(rd); slot += 1
            if dl[rd.tag] - i < o.warn: print(f"; WARN late read {rd.tag} gap {i} deadline {dl[rd.tag]}", file=sys.stderr)
        while slot < 4:
            v = pick(i, 4 - slot)
            if not v: break
            put(v); slot += v.cost
        over += max(0, slot - 4)
    assert not reads and di == len(dmas)
    print(f"; leftover VALU {len(valu)} (cost {sum(v.cost for v in valu)}), overflow {over}, first store {firststore}, bars {allb}", file=sys.stderr)
    stamp(4)
    print(f"; stores left {len(stores)}; last load issued at gap {lastdma}", file=sys.stderr)
    i = 0
    while i < len(valu):
        v = valu[i]
        while stores and all(d.at is not None for d in stores[0].dep): A(stores.pop(0).text)
        if v.need is not None and not o.nomfma:
            gap = 8 - (len(L) - at[v.need] - 1)
            if gap > 0: A(f"s_nop {gap - 1}"); at[v.need] -= 8
        two = v.pk and i + 1 < len(valu) and valu[i + 1].text.split()[0] == v.text.split()[0] and not valu[i + 1].pk and o.pk
        if any(d.at == len(L) - 1 and d.cost == 2 for d in v.dep + (valu[i + 1].dep if two else [])): A("s_nop 0")
        v.at = len(L)
        if two: valu[i + 1].at = len(L); A(v.pk); i += 2
        else: A(v.text); i += 1
    for st in stores: A(st.text)
    pad(5)
    if o.stamps:
        A("s_waitcnt vmcnt(0)")
        stamp(5)
        A("s_cmp_lg_u32 s3, 0")
        A("s_cbranch_scc1 L_end")
        for s in ("s_mov_b32 s20, s74", "s_and_b32 s21, s75, 0xffff", "s_mov_b32 s22, 0x100000", "s_waitcnt lgkmcnt(0)",
                  "s_lshl_b32 s33, s2, 7", "v_mov_b32 v6, 0"): A(s)
        for i in range(tn[0]):
            A(f"v_mov_b32 v12, s{TR[i]}")
            A(f"buffer_store_dword v12, v6, s[20:23], s33 offen offset:{4*i}")
        for i in range(0 if o.traj else 6):
            base = 40 + 4 * i if i < 3 else 80 + 4 * (i - 3)
            for jx in range(4): A(f"v_mov_b32 v{12+jx}, s{base+jx}")
            A(f"buffer_store_dwordx4 v[12:15], v6, s[20:23], s33 offen offset:{16*i}")
            A("s_nop 1")
    L.append("L_end:")
    A("s_endpgm")
    A(".fill 2048, 4, 0xbf810000")
    if o.abl:
        i0 = next(i for i, x in enumerate(L) if "v_mfma" in x) + 200
        drop = {"x": "ds_read_b128", "w": "ds_read_b64_tr", "e": ("v_exp", "v_rcp"), "v": ("v_exp", "v_rcp", "v_fma", "v_mul", "v_cvt"), "d": "buffer_load_dwordx4", "s": "buffer_store_dwordx4 v[1", "t": "buffer_store_dwordx4 v[2"}
        pre_ = tuple(sum([[drop[c]] if isinstance(drop[c], str) else list(drop[c]) for c in o.abl], []))
        L = [x for i, x in enumerate(L) if i < i0 or not x.strip().startswith(pre_) or "s[20:23]" in x]
    if not o.nomfma and not o.abl: check_hazards(L)
    if NST: L = insert_stubs(L, NST, o.ioff)
    return HEADER + f"; @launch grid=(256,1,1) block=(256,1,1) lds={LDS}\n" + \
        '.amdgcn_target "amdgcn-amd-amdhsa--gfx950"\n.text\n' + \
        f".globl {KN}\n.p2align 12\n.p2align 8\n.type {KN},@function\n" + "\n".join(L) + "\n" + \
        f""".section .rodata,"a"
.p2align 6
.amdhsa_kernel {KN}
  .amdhsa_next_free_vgpr {256 + 24 * NW + (8 * NL if o.outord else 0)}
  .amdhsa_next_free_sgpr 102
  .amdhsa_accum_offset 256
  .amdhsa_group_segment_fixed_size 0
  .amdhsa_kernarg_size 72
  .amdhsa_user_sgpr_count 2
  .amdhsa_user_sgpr_kernarg_segment_ptr 1
  .amdhsa_system_sgpr_workgroup_id_x 1
  .amdhsa_float_denorm_mode_32 3
.end_amdhsa_kernel
"""

def insert_stubs(L, n, base):
    import subprocess, tempfile
    txt = '.amdgcn_target "amdgcn-amd-amdhsa--gfx950"\n.text\n' + "\n".join(L) + "\n" + "".join(f"L_stub{k}:\n" for k in range(n))
    d = tempfile.mkdtemp()
    open(d + "/a.s", "w").write(txt)
    subprocess.check_call(["clang", "-x", "assembler", "-target", "amdgcn-amd-amdhsa", "-mcpu=gfx950", "-c", d + "/a.s", "-o", d + "/a.o"])
    dis = subprocess.check_output(["llvm-objdump", "-d", "--mcpu=gfx950", d + "/a.o"], text=True)
    addrs = [int(m.group(1), 16) for m in re.finditer(r"// ([0-9A-F]{12}):", dis)]
    amap = dict(zip([i for i, x in enumerate(L) if x.startswith("    ") and not x.strip().startswith(".")], addrs))
    out, k = [], 0
    for i, x in enumerate(L):
        if k < n and i in amap and base + amap[i] + 4 * k >= (base // 0x1000 + 1 + k) * 0x1000:
            out.append(f"L_stub{k}:"); out.append(f"    s_cbranch_vccnz L_back{k // 4}"); k += 1
        out.append(x)
    assert k == n, k
    return out

if __name__ == "__main__":
    ap = argparse.ArgumentParser()
    ap.add_argument("out")
    for f in ("traj", "stamps", "nomfma", "nodma", "nostore"): ap.add_argument("--" + f, action="store_true")
    for k, v in dict(dsched="", stlast="sc1", abl="", hop="", pad="", stflag="sc1 nt", porder="w0,x0.01,I,x0.23,S,A,x1,L,w1.01,B|w1.2345,x2,w2", g0="x0.01",
                     eb="8:x0.23,32:x1.01,56:x1.23+L", bpos="0:12", fh="5,7,9,11,13,15", place="r,r,0,1,2,3,4,5", qs="0,4",
                     xi="", xl="1:0,2:0,3:0,4:1,5:1,6:1,7:1").items(): ap.add_argument("--" + k, default=v)
    for k, v in dict(t1=0, pkall=0, rot=1, nlast=1, early=1, hoist=1, neg=1, pland=0, swapend=1, barpad=0, st0=200, stsp=20, dlate=14, otouch=-1, n1=10, nst=6, ioff=0x2300, b0=5, b1=11, b2=4, xlead=16, ylead=30, dspace=58, dspace0=40, dspace2=70,
                     warn=8, holdst=1, look=1, pk=1, tend=1, outord=1).items(): ap.add_argument("--" + k, type=int, default=v)
    o = ap.parse_args()
    open(o.out, "w").write(gen(o))
```
